```python
import torch

def _softmax(x, axis=-1):
    return torch.softmax(x, dim=axis)
def _gelu(x):
    return torch.nn.functional.gelu(x, approximate="tanh")
def _silu(x):
    return torch.nn.functional.silu(x)
def _sigmoid(x):
    return torch.sigmoid(x)
def _layernorm(x, axis=-1, eps=1e-5):
    m = x.mean(dim=axis, keepdim=True)
    v = x.var(dim=axis, keepdim=True, unbiased=False)
    return (x - m) / torch.sqrt(v + eps)
def _scatter_add(tgt, idx, src, axis=0):
    return tgt.clone().index_add_(axis, idx, src)
def _segment_sum(src, seg, n):
    out = torch.zeros((n,) + src.shape[1:], dtype=src.dtype)
    return out.index_add_(0, seg, src)
def _pad(x, pw):
    flat = tuple(v for pair in reversed(pw) for v in pair)
    return torch.nn.functional.pad(x, flat)

kernel_name = 'gated_mix__mha_block__moe_arch_mod__prompt'

def setup_inputs():

    _w = (lambda a: (lambda t: t.to(torch.bfloat16) if t.is_floating_point() else t)(torch.as_tensor(a)))
    def _A_setup():
        B, S, D, H = 1, 2048, 512, 32
        return {
            "x": _w((lambda *s: torch.randn(*s, dtype=torch.bfloat16) * 0.05)(B, S, D)),
            "wqkv": _w((lambda *s: torch.randn(*s, dtype=torch.bfloat16) * 0.8)(D, 3 * D)),
            "wo": _w((lambda *s: torch.randn(*s, dtype=torch.bfloat16) * 0.1)(D, D)),
        }
    _A_in = _A_setup()

    def _B_setup():
        B, S, D, F, C = 1, 2048, 512, 1376, 1
        return {
            "x": _w((lambda *s: torch.randn(*s, dtype=torch.bfloat16) * 0.05)(B, S, D)),
            "w_r": _w((lambda *s: torch.randn(*s, dtype=torch.bfloat16) * 3.2)(D)),
            "w_gate": _w((lambda *s: torch.randn(*s, dtype=torch.bfloat16) * 0.2)(D, F)),
            "w_up": _w((lambda *s: torch.randn(*s, dtype=torch.bfloat16) * 0.2)(D, F)),
            "w_down": _w((lambda *s: torch.randn(*s, dtype=torch.bfloat16) * 0.2)(F, D)),
        }
    _B_in = _B_setup()

    return {
        "A_x": _A_in["x"],
        "A_wqkv": _A_in["wqkv"],
        "A_wo": _A_in["wo"],
        "B_x": _B_in["x"],
        "B_w_r": _B_in["w_r"],
        "B_w_gate": _B_in["w_gate"],
        "B_w_up": _B_in["w_up"],
        "B_w_down": _B_in["w_down"],
        "gate_w": _w((lambda *s: torch.randn(*s, dtype=torch.bfloat16) * 0.05)(512) * 16.0),
    }

def reference(A_x, A_wqkv, A_wo, B_x, B_w_r, B_w_gate, B_w_up, B_w_down, gate_w):
    def _A_ref(x, wqkv, wo):
        B, S, D = x.shape
        H = 32
        Dh = D // H
        qkv = (lambda x, *d: x.permute(*d))((x @ wqkv).reshape(B, S, 3, H, Dh), 2, 0, 3, 1, 4)
        q, k, v = qkv[0], qkv[1], qkv[2]
        scores = torch.einsum("bhqd,bhkd->bhqk", q, k) * (Dh ** -0.5)
        p = _softmax(scores, axis=-1)
        o = torch.einsum("bhqk,bhkd->bhqd", p, v)
        return (lambda x, *d: x.permute(*d))(o, 0, 2, 1, 3).reshape(B, S, D) @ wo

    def _B_ref(x, w_r, w_gate, w_up, w_down):
        B, S, D = x.shape
        C = 1
        r = x @ w_r
        idx = torch.argsort(-r, axis=-1)[:, :C]
        idx_e = (lambda x, n, axis: torch.repeat_interleave(x, n, dim=axis))(idx.reshape(B, C, 1), D, axis=2)
        x_sel = (lambda x, i, axis: torch.take_along_dim(x, i, dim=axis))(x, idx_e, axis=1)
        g = _silu(x_sel @ w_gate)
        u = x_sel @ w_up
        y = (g * u) @ w_down
        r_sel = _sigmoid((lambda x, i, axis: torch.take_along_dim(x, i, dim=axis))(r, idx, axis=1))
        y = y * r_sel.reshape(B, C, 1)
        b_off = (torch.arange(B) * S).reshape(B, 1)
        flat_idx = (idx + b_off).reshape(B * C)
        zero = (x * 0.0).reshape(B * S, D)
        upd = _scatter_add(zero, flat_idx, y.reshape(B * C, D), axis=0)
        return x + upd.reshape(B, S, D)

    x = A_x
    g = _sigmoid((x * gate_w).sum(-1, keepdims=True))
    a = _A_ref(x, A_wqkv, A_wo)
    b = _B_ref(x, B_w_r, B_w_gate, B_w_up, B_w_down)
    return g * a + (1 - g) * b
```

```python
import re

class Asm:
    def __init__(self):
        self.lines = []
    def __call__(self, s):
        for l in s.split("\n"):
            l = l.rstrip()
            if l.strip() == "":
                continue
            if l.strip().endswith(":") or l.strip().startswith(".") or l.strip().startswith(";"):
                self.lines.append(l.strip() if l.strip().endswith(":") else l.strip())
            else:
                self.lines.append("    " + l.strip())
    def label(self, n): self.lines.append(n + ":")
    def c(self, s): self.lines.append("    ; " + s)
    def text(self): return "\n".join(self.lines) + "\n"

def vr(a, n=1):
    return f"v{a}" if n == 1 else f"v[{a}:{a+n-1}]"
def sr(a, n=1):
    return f"s{a}" if n == 1 else f"s[{a}:{a+n-1}]"

TRANS = ("v_exp_f32", "v_log_f32", "v_rcp_f32", "v_rsq_f32", "v_sqrt_f32", "v_sin_f32", "v_cos_f32")

def _regs(tok):
    tok = tok.strip()
    tok = re.sub(r"^(-|abs\(|\|)+", "", tok).rstrip(")|")
    m = re.fullmatch(r"([vsa])(\d+)", tok)
    if m: return {(m.group(1), int(m.group(2)))}
    m = re.fullmatch(r"([vsa])\[(\d+):(\d+)\]", tok)
    if m: return {(m.group(1), i) for i in range(int(m.group(2)), int(m.group(3)) + 1)}
    if tok in ("vcc", "exec", "m0", "scc"): return {(tok, 0)}
    if tok in ("vcc_lo", "vcc_hi"): return {("vcc", 0)}
    if tok in ("exec_lo", "exec_hi"): return {("exec", 0)}
    return set()

def parse(line):
    l = line.split(";")[0].strip()
    if not l or l.endswith(":") or l.startswith("."): return None
    p = l.split(None, 1)
    op = p[0]
    ops = []
    if len(p) > 1:
        cur = ""; d = 0
        for ch in p[1]:
            if ch == "[": d += 1
            if ch == "]": d -= 1
            if ch == "," and d == 0: ops.append(cur.strip()); cur = ""
            else: cur += ch
        ops.append(cur.strip())
    mods = ""
    if ops:
        last = ops[-1].split(None, 1)
        ops[-1] = last[0]
        mods = last[1] if len(last) > 1 else ""
    kind = "other"; W = set(); R = set()
    def rall(o):
        s = set()
        for t in o: s |= _regs(t)
        return s
    if op.startswith("v_mfma") or op.startswith("v_smfmac"):
        kind = "mfma"; W = _regs(ops[0]); R = rall(ops[1:])
        if op.startswith("v_smfmac"): R |= W
    elif op.startswith("v_"):
        kind = "valu"
        if op.startswith("v_cmp"):
            W = _regs(ops[0]); R = rall(ops[1:])
        elif "permlane" in op and "swap" in op:
            W = rall(ops[:2]); R = rall(ops[:2])
        elif op.startswith(("v_add_co", "v_sub_co", "v_addc_co", "v_subb_co")):
            W = rall(ops[:2]); R = rall(ops[2:])
        else:
            W = _regs(ops[0]); R = rall(ops[1:])
            if op.startswith(("v_fmac", "v_dot2c", "v_writelane")) or "_dpp" in op or "_sdwa" in op: R |= W
    elif op.startswith(("buffer_", "global_")):
        kind = "vmem"
        if "lds" in mods.split() or "load_lds" in op:
            R = rall(ops) | {("m0", 0)}
        elif "load" in op:
            W = _regs(ops[0]); R = rall(ops[1:])
        else:
            R = rall(ops)
            if "atomic" in op and "sc0" in mods.split(): W = _regs(ops[0])
    elif op.startswith("ds_"):
        kind = "ds"
        if "read" in op or "permute" in op or "swizzle" in op:
            W = _regs(ops[0]); R = rall(ops[1:])
        else: R = rall(ops)
    elif op.startswith("s_"):
        kind = "salu"
        if op.startswith(("s_cmp", "s_cbranch", "s_branch", "s_waitcnt", "s_nop", "s_barrier", "s_endpgm", "s_sleep", "s_setprio", "s_bitcmp")):
            R = rall(ops)
        else:
            W = _regs(ops[0]) if ops else set(); R = rall(ops[1:])
            if "saveexec" in op: W |= {("exec", 0)}
    return dict(op=op, ops=ops, mods=mods, kind=kind, W=W, R=R, line=l)

def passes(op):
    if "32x32" in op: return 8
    if "16x16" in op: return 4
    return 16

def check_seq(ins, where=""):
    probs = []
    n = len(ins)
    for i, a in enumerate(ins):
        dist = 0
        for j in range(i + 1, min(n, i + 24)):
            b = ins[j]
            need = 0; why = ""
            Wv = {r for r in a["W"] if r[0] in "va" and r[0] != "vcc"}
            Wv = {r for r in a["W"] if r[0] in ("v", "a")}
            Ws = {r for r in a["W"] if r[0] in ("s", "vcc")}
            if a["kind"] == "mfma":
                p = passes(a["op"])
                if b["kind"] == "mfma":
                    smf = b["op"].startswith("v_smfmac")
                    bA = _regs(b["ops"][1]); bB = _regs(b["ops"][2])
                    bC = _regs(b["ops"][0]) if smf else _regs(b["ops"][3])
                    bI = _regs(b["ops"][3]) if smf else set()
                    if Wv & (bA | bB | bI): need = {4: 8, 8: 12, 16: 20}[p]; why = "mfma D->AB"
                    elif Wv & bC and (Wv != bC or passes(b["op"]) != p): need = {4: 6, 8: 10, 16: 18}[p]; why = "mfma D->C partial"
                elif b["kind"] in ("valu", "vmem", "ds") and (Wv & (b["R"] | b["W"])):
                    need = {4: 8, 8: 12, 16: 20}[p]; why = "mfma D->valu/mem"
                if b["kind"] == "valu":
                    aC = _regs(a["ops"][0]) if a["op"].startswith("v_smfmac") else _regs(a["ops"][3])
                    if aC & b["W"]:
                        nn = {4: 3, 8: 7, 16: 15}[p]
                        if nn > need: need = nn; why = "mfma C WAR"
            elif a["kind"] == "valu":
                opa = a["op"].replace("_e32", "").replace("_e64", "")
                if b["kind"] == "mfma" and (Wv & b["R"]): need = 2; why = "valu->mfma"
                if b["kind"] == "valu":
                    opb = b["op"]
                    if opa in TRANS and (Wv & b["R"]) and opb.replace("_e32", "") not in TRANS: need = max(need, 1); why = "trans->valu"
                    if "_dpp" in opb and (Wv & _regs(b["ops"][1])): need = max(need, 2); why = "valu->dpp"
                    if "permlane" in opb and (Wv & b["R"]): need = max(need, 2); why = "valu->permlane"
                    if opb.startswith(("v_readlane", "v_readfirstlane")) and (Wv & b["R"]): need = max(need, 1); why = "valu->readlane"
                    if Ws & b["R"]:
                        if opb.startswith(("v_readlane", "v_writelane")): need = max(need, 4); why = "valu sgpr->lanesel"
                        else: need = max(need, 2); why = "valu sgpr->valu"
                    if opa.startswith("v_dot"):
                        if (Wv & (b["R"] | b["W"])):
                            same = opb.replace("_e32", "") == opa
                            if same:
                                srcAB = set()
                                for t in b["ops"][1:3]: srcAB |= _regs(t)
                                if Wv & srcAB: need = max(need, 3); why = "dot->dot AB"
                            else: need = max(need, 3); why = "dot->other"
                    if "_sdwa" in a["op"] and (Wv & (b["R"] | b["W"])): need = max(need, 1); why = "sdwa->valu"
                if opa.startswith("v_dot") and b["kind"] in ("vmem", "ds", "mfma") and (Wv & b["R"]): need = max(need, 3); why = "dot->mem"
                if b["kind"] == "vmem" and (Ws & b["R"]): need = max(need, 5); why = "valu sgpr->vmem"
            elif a["kind"] == "salu":
                if ("m0", 0) in a["W"] and b["kind"] == "vmem" and ("m0", 0) in b["R"]: need = 1; why = "m0->dma"
            elif a["kind"] == "vmem":
                if "store" in a["op"] and ("x4" in a["op"] or "x3" in a["op"]):
                    data = _regs(a["ops"][0]) if a["op"].startswith("buffer") else _regs(a["ops"][1])
                    if b["kind"] in ("valu", "mfma") and (data & b["W"]): need = 2; why = "store data WAR"
                    elif (data & b["W"]): need = 1; why = "store data WAR"
            if need > dist:
                probs.append(f"{where}: [{why}] need {need} have {dist}: '{a['line']}' -> '{b['line']}'")
            if b["op"] == "s_nop": dist += int(b["ops"][0], 0) + 1
            else: dist += 1
            if dist >= 20: break
    return probs

def check_text(text):
    lines = text.split("\n")
    ins = []; labels = {}
    for l in lines:
        s = l.split(";")[0].strip()
        if s.endswith(":"): labels[s[:-1]] = len(ins); continue
        p = parse(l)
        if p: ins.append(p)
    probs = []
    run = []
    for p in ins:
        run.append(p)
        if p["op"] in ("s_branch", "s_endpgm"):
            probs += check_seq(run, "lin"); run = []
    probs += check_seq(run, "lin")
    for i, p in enumerate(ins):
        if p["op"].startswith(("s_cbranch", "s_branch")):
            t = labels.get(p["ops"][0])
            if t is None: continue
            lo = i
            while lo > 0 and i - lo < 24 and ins[lo - 1]["op"] not in ("s_branch", "s_endpgm"): lo -= 1
            hi = t
            while hi < len(ins) and hi - t < 24:
                hi += 1
                if ins[hi - 1]["op"] in ("s_branch", "s_endpgm"): break
            probs += check_seq(ins[lo:i + 1] + ins[t:hi], "br->" + p["ops"][0])
    return sorted(set(probs))
```

```python
import sys
from asmlib import *

NAME = "gated_mix__mha_block__moe_arch_mod__prompt"
WS_KV = 0x000000
WS_QF = 0x400000
WS_OF = 0x600000
WS_R  = 0x800000
WS_G  = 0x802000
WS_Y  = 0x804000
WS_IX = 0x805000
WS_SIZE = 0x900000
QSCALE = 0x3EB8AA3B
LOG2E = 0x3FB8AA3B

def srd(e, d, base, size):
    e(f"s_mov_b32 s{d}, s{base}")
    e(f"s_mov_b32 s{d+1}, s{base+1}")
    e(f"s_mov_b32 s{d+2}, {size:#x}")
    e(f"s_mov_b32 s{d+3}, 0x20000")

def kd(name, nv, ns):
    return f""".amdhsa_kernel {name}
  .amdhsa_next_free_vgpr {nv}
  .amdhsa_next_free_sgpr {ns}
  .amdhsa_accum_offset {(nv+3)//4*4}
  .amdhsa_group_segment_fixed_size 0
  .amdhsa_kernarg_size 96
  .amdhsa_user_sgpr_count 2
  .amdhsa_user_sgpr_kernarg_segment_ptr 1
  .amdhsa_system_sgpr_workgroup_id_x 1
.end_amdhsa_kernel
"""

def head(e, name):
    e(f".globl {name}")
    e(".p2align 8")
    e(f".type {name},@function")
    e.label(name)

def proj(e, NS=4):
    head(e, "proj_kernel")
    e("""
    s_cmp_ge_u32 s2, 256
    s_cbranch_scc1 LA_end
    s_load_dwordx4 s[36:39], s[0:1], 0
    s_load_dwordx2 s[40:41], s[0:1], 32
    s_load_dwordx2 s[42:43], s[0:1], 64
    s_load_dwordx2 s[44:45], s[0:1], 88
    v_lshrrev_b32 v2, 6, v0
    v_and_b32 v1, 63, v0
    v_readfirstlane_b32 s20, v2
    s_and_b32 s28, s2, 7
    s_lshr_b32 s29, s2, 3
    s_and_b32 s21, s28, 1
    s_lshl_b32 s21, s21, 2
    s_and_b32 s30, s29, 3
    s_add_u32 s21, s21, s30
    s_lshr_b32 s22, s28, 1
    s_lshl_b32 s22, s22, 3
    s_lshr_b32 s31, s29, 2
    s_add_u32 s22, s22, s31
    s_lshl_b32 s23, s30, 1
    s_add_u32 s23, s23, s31
    """)
    e.c("DMA voffsets")
    e("""
    v_lshrrev_b32 v2, 3, v1
    v_and_b32 v3, 7, v1
    v_lshrrev_b32 v4, 4, v1
    v_xor_b32 v5, v3, v4
    v_lshlrev_b32 v5, 4, v5
    v_lshl_add_u32 v10, v2, 10, v5
    v_xor_b32 v11, 64, v10
    v_add_u32 v11, 7168, v11
    v_and_b32 v4, 1, v4
    v_mul_u32_u24 v6, 3072, v2
    v_lshlrev_b32 v7, 1, v4
    v_xor_b32 v7, v3, v7
    v_lshl_add_u32 v12, v7, 4, v6
    v_xor_b32 v7, 4, v7
    v_lshl_add_u32 v13, v7, 4, v6
    v_lshlrev_b32 v7, 2, v4
    v_xor_b32 v7, v3, v7
    v_lshl_add_u32 v14, v7, 4, v6
    v_lshlrev_b32 v15, 4, v1
    """)
    e("s_waitcnt lgkmcnt(0)")
    srd(e, 4, 36, 0x200000)
    srd(e, 8, 38, 0x180000)
    srd(e, 12, 44, WS_SIZE)
    srd(e, 16, 40, 1024)
    srd(e, 24, 42, 1024)
    e.c("router/gate loads (oldest vmem ops)")
    e("""
    s_lshl_b32 s32, s22, 6
    s_lshl_b32 s33, s21, 3
    s_add_u32 s32, s32, s33
    s_lshl_b32 s33, s20, 1
    s_add_u32 s32, s32, s33
    s_lshl_b32 s33, s32, 10
    buffer_load_dwordx4 v[28:31], v15, s[4:7], s33 offen
    buffer_load_dwordx4 v[32:35], v15, s[4:7], s33 offen offset:1024
    buffer_load_dwordx4 v[36:39], v15, s[16:19], 0 offen
    buffer_load_dwordx4 v[40:43], v15, s[24:27], 0 offen
    s_lshl_b32 s46, s22, 16
    s_lshl_b32 s47, s20, 14
    s_add_u32 s46, s46, s47
    s_mul_i32 s47, s20, 49152
    s_lshl_b32 s48, s21, 7
    s_add_u32 s47, s47, s48
    s_lshl_b32 s49, s20, 13
    """)
    def dma(c):
        slot = c % NS
        e(f"s_add_u32 s50, s23, {c}")
        e("s_and_b32 s50, s50, 7")
        e("s_lshl_b32 s51, s50, 7")
        e("s_add_u32 s51, s51, s46")
        e("s_mul_i32 s52, s50, 196608")
        e(f"s_add_u32 m0, s49, {slot*32768}")
        e("s_add_u32 s52, s52, s47")
        e("buffer_load_dwordx4 v10, s[4:7], s51 offen lds")
        e("buffer_load_dwordx4 v11, s[4:7], s51 offen offset:1024 lds")
        e(f"s_add_u32 m0, s49, {slot*32768+2048}")
        e("s_add_u32 s53, s52, 24576")
        e("buffer_load_dwordx4 v12, s[8:11], s52 offen lds")
        e("buffer_load_dwordx4 v13, s[8:11], s52 offen offset:1024 lds")
        e("buffer_load_dwordx4 v14, s[8:11], s52 offen offset:2048 lds")
        e(f"s_add_u32 m0, s49, {slot*32768+5120}")
        e("s_nop 0")
        e("buffer_load_dwordx4 v12, s[8:11], s53 offen lds")
        e("buffer_load_dwordx4 v13, s[8:11], s53 offen offset:1024 lds")
        e("buffer_load_dwordx4 v14, s[8:11], s53 offen offset:2048 lds")
    for c in range(NS): dma(c)
    e.c("LDS read addresses")
    e("""
    v_and_b32 v2, 31, v1
    v_lshrrev_b32 v3, 5, v1
    v_lshrrev_b32 v4, 4, v2
    v_lshlrev_b32 v4, 13, v4
    v_and_b32 v5, 15, v2
    v_lshl_add_u32 v4, v5, 7, v4
    v_bfe_u32 v5, v2, 1, 3
    v_xor_b32 v5, v5, v3
    s_and_b32 s54, s20, 1
    s_lshl_b32 s55, s54, 14
    s_xor_b32 s56, s55, 16384
    """)
    for ks in range(4):
        e(f"v_xor_b32 v6, {2*ks}, v5")
        e(f"v_lshl_add_u32 v6, v6, 4, v4")
        e(f"v_add_u32 v{16+ks}, s55, v6")
        e(f"v_add_u32 v{20+ks}, s56, v6")
    e("""
    v_bfe_u32 v4, v1, 4, 1
    v_bfe_u32 v5, v1, 2, 2
    v_and_b32 v6, 3, v1
    v_bfe_u32 v7, v1, 3, 1
    v_mul_u32_u24 v8, 3072, v3
    v_lshl_add_u32 v8, v5, 7, v8
    v_lshl_add_u32 v8, v6, 3, v8
    v_add_u32 v8, 2048, v8
    v_lshlrev_b32 v9, 1, v4
    v_xor_b32 v9, v9, v7
    v_xor_b32 v9, s20, v9
    v_lshl_add_u32 v24, v9, 5, v8
    v_lshl_add_u32 v24, v4, 10, v24
    s_and_b32 s57, s20, 2
    v_lshlrev_b32 v9, 1, v7
    v_xor_b32 v9, v9, v4
    v_xor_b32 v9, s57, v9
    v_lshl_add_u32 v25, v9, 5, v8
    v_add_u32 v25, 2048, v25
    """)
    curhi = 0
    def reads(c, ks):
        so = (c % NS) * 32768 - curhi
        f = 96 + 16 * ks
        e(f"ds_read_b128 {vr(f,4)}, v{16+ks} offset:{so}")
        e(f"ds_read_b64_tr_b16 {vr(f+8,2)}, v24 offset:{so+ks*8192}")
        e(f"ds_read_b64_tr_b16 {vr(f+10,2)}, v24 offset:{so+ks*8192+512}")
        e(f"ds_read_b128 {vr(f+4,4)}, v{20+ks} offset:{so}")
        e(f"ds_read_b64_tr_b16 {vr(f+12,2)}, v25 offset:{so+ks*8192}")
        e(f"ds_read_b64_tr_b16 {vr(f+14,2)}, v25 offset:{so+ks*8192+512}")
    def mf(c, ks):
        f = 96 + 16 * ks
        z = (c == 0 and ks == 0)
        e(f"v_mfma_f32_32x32x16_bf16 v[48:63], {vr(f+8,4)}, {vr(f,4)}, {'0' if z else 'v[48:63]'}")
        e(f"v_mfma_f32_32x32x16_bf16 v[64:79], {vr(f+8,4)}, {vr(f+4,4)}, {'0' if z else 'v[64:79]'}")
        e(f"v_mfma_f32_32x32x16_bf16 v[80:95], {vr(f,4)}, {vr(f+12,4)}, {'0' if z else 'v[80:95]'}")
    for c in range(8):
        e.c(f"chunk {c}")
        want = ((c % NS) // 2) * 65536
        if want != curhi:
            for r in list(range(16, 26)):
                e(f"v_add_u32 v{r}, {(want - curhi) & 0xffffffff:#x}, v{r}")
            curhi = want
        out = (NS - 1) if c == 0 else (min(c + NS - 2, 7) - c)
        e(f"s_waitcnt vmcnt({8*out})")
        e("s_barrier")
        reads(c, 0); reads(c, 1)
        if c >= 1 and c + NS - 1 <= 7: dma(c + NS - 1)
        e("s_waitcnt lgkmcnt(6)")
        mf(c, 0); reads(c, 2)
        e("s_waitcnt lgkmcnt(6)")
        mf(c, 1); reads(c, 3)
        e("s_waitcnt lgkmcnt(6)")
        mf(c, 2)
        e("s_waitcnt lgkmcnt(0)")
        mf(c, 3)
    e.c("router / gate dot products (fills the MFMA drain)")
    e("v_mov_b32 v2, 0\nv_mov_b32 v3, 0\nv_mov_b32 v4, 0\nv_mov_b32 v5, 0")
    for j in range(4):
        e(f"v_dot2c_f32_bf16 v2, v{28+j}, v{36+j}")
        e(f"v_dot2c_f32_bf16 v3, v{32+j}, v{36+j}")
        e(f"v_dot2c_f32_bf16 v4, v{28+j}, v{40+j}")
        e(f"v_dot2c_f32_bf16 v5, v{32+j}, v{40+j}")
    e("s_nop 2")
    for m in ("row_shr:1 row_mask:0xf", "row_shr:2 row_mask:0xf", "row_shr:4 row_mask:0xf", "row_shr:8 row_mask:0xf",
              "row_bcast:15 row_mask:0xa", "row_bcast:31 row_mask:0xc"):
        for r in (2, 3, 4, 5):
            e(f"v_add_f32_dpp v{r}, v{r}, v{r} {m} bank_mask:0xf")
    e(f"""
    v_mul_f32 v4, 0x{0x80000000|LOG2E:x}, v4
    v_mul_f32 v5, 0x{0x80000000|LOG2E:x}, v5
    v_exp_f32 v4, v4
    v_exp_f32 v5, v5
    s_lshl_b32 s33, s32, 2
    v_add_f32 v4, 1.0, v4
    v_add_f32 v5, 1.0, v5
    v_rcp_f32 v4, v4
    v_rcp_f32 v5, v5
    v_mov_b32 v6, s33
    s_mov_b32 s34, {WS_R:#x}
    s_mov_b32 s35, {WS_G:#x}
    s_mov_b32 exec_lo, 0
    s_mov_b32 exec_hi, 0x80000000
    buffer_store_dwordx2 v[2:3], v6, s[12:15], s34 offen
    buffer_store_dwordx2 v[4:5], v6, s[12:15], s35 offen
    s_mov_b64 exec, -1
    """)
    e.c("epilogue: Q, K, V fragments")
    e(f"""
    s_lshl_b32 s58, s21, 2
    s_add_u32 s58, s58, s20
    s_lshl_b32 s59, s22, 1
    s_add_u32 s60, s59, s54
    s_xor_b32 s61, s60, 1
    s_lshl_b32 s62, s58, 16
    s_add_u32 s62, s62, {WS_QF:#x}
    s_lshl_b32 s63, s60, 10
    s_add_u32 s63, s63, s62
    s_lshl_b32 s64, s61, 10
    s_add_u32 s64, s64, s62
    s_lshl_b32 s65, s58, 17
    s_lshl_b32 s66, s60, 11
    s_add_u32 s66, s66, s65
    s_lshl_b32 s67, s61, 11
    s_add_u32 s67, s67, s65
    s_and_b32 s68, s58, 0xfe
    s_lshl_b32 s68, s68, 17
    s_lshl_b32 s69, s60, 11
    s_add_u32 s68, s68, s69
    s_mov_b32 s70, {QSCALE:#x}
    v_and_b32 v6, 0x33, v1
    v_bfe_u32 v7, v1, 2, 1
    v_bfe_u32 v8, v1, 3, 1
    v_lshl_or_b32 v6, v7, 3, v6
    v_lshl_or_b32 v6, v8, 2, v6
    v_lshlrev_b32 v6, 4, v6
    v_and_b32 v7, 15, v1
    v_lshlrev_b32 v7, 4, v7
    v_bfe_u32 v8, v1, 4, 1
    v_lshl_add_u32 v7, v8, 17, v7
    v_lshrrev_b32 v8, 5, v1
    v_lshl_add_u32 v7, v8, 8, v7
    """)
    for (acc, sq, sk, o) in ((48, 63, 66, 96), (64, 64, 67, 104)):
        for j in range(8): e(f"v_mul_f32 v{acc+j}, s70, v{acc+j}")
        for j in range(4): e(f"v_cvt_pk_bf16_f32 v{o+j}, v{acc+2*j}, v{acc+2*j+1}")
        for j in range(4): e(f"v_cvt_pk_bf16_f32 v{o+4+j}, v{acc+8+2*j}, v{acc+8+2*j+1}")
        e(f"buffer_store_dwordx4 {vr(o,4)}, v15, s[12:15], s{sq} offen")
        e(f"buffer_store_dwordx4 {vr(o+4,4)}, v6, s[12:15], s{sk} offen")
    for j in range(8): e(f"v_cvt_pk_bf16_f32 v{112+j}, v{80+2*j}, v{80+2*j+1}")
    e("buffer_store_dwordx4 v[112:115], v7, s[12:15], s68 offen offset:1024")
    e("buffer_store_dwordx4 v[116:119], v7, s[12:15], s68 offen offset:1536")
    e.c("WG0 wave0 zeroes the MoE accumulator")
    e(f"""
    s_lshl_b32 s71, s2, 2
    s_add_u32 s71, s71, s20
    s_cmp_lg_u32 s71, 0
    s_cbranch_scc1 LA_end
    v_mov_b32 v120, 0
    v_mov_b32 v121, 0
    v_mov_b32 v122, 0
    v_mov_b32 v123, 0
    s_mov_b32 s72, {WS_Y:#x}
    buffer_store_dwordx4 v[120:123], v15, s[12:15], s72 offen
    buffer_store_dwordx4 v[120:123], v15, s[12:15], s72 offen offset:1024
    """)
    e.label("LA_end")
    e("s_endpgm")

RING = 8 * 2064
MOE_LDS = 4 * RING
def attn(e):
    head(e, "attn_kernel")
    SA, SB, OA, OB, MA, MB = 16, 32, 48, 64, 80, 96
    QA, QB = 112, 116
    K = (120, 124); V0 = (128, 132); V1 = (136, 140)
    e("""
    s_cmp_ge_u32 s2, 256
    s_cbranch_scc1 LB_end
    s_load_dwordx2 s[44:45], s[0:1], 88
    v_lshrrev_b32 v2, 6, v0
    v_and_b32 v1, 63, v0
    v_readfirstlane_b32 s20, v2
    s_and_b32 s21, s2, 7
    s_lshr_b32 s22, s2, 3
    v_lshlrev_b32 v15, 4, v1
    s_cmp_eq_u32 s20, 4
    s_cbranch_scc1 LB_moe
    s_lshl_b32 s58, s21, 2
    s_add_u32 s58, s58, s20
    s_lshl_b32 s59, s58, 17
    """)
    e(f"s_mul_i32 s49, s20, {RING}")
    e("s_waitcnt lgkmcnt(0)")
    srd(e, 8, 44, WS_SIZE)
    e("""
    s_add_u32 s4, s44, s59
    s_addc_u32 s5, s45, 0
    s_mov_b32 s6, 0x20000
    s_mov_b32 s7, 0x20000
    """)
    e(f"""
    s_lshl_b32 s60, s58, 16
    s_lshl_b32 s61, s22, 11
    s_add_u32 s60, s60, s61
    s_add_u32 s60, s60, {WS_QF:#x}
    buffer_load_dwordx4 {vr(QA,4)}, v15, s[8:11], s60 offen
    buffer_load_dwordx4 {vr(QB,4)}, v15, s[8:11], s60 offen offset:1024
    """)
    e.c("LDS addresses: v10 = K, v11 = V t0, v12 = V t1 ; ones chunk at +2048 of each slot")
    e(f"""
    v_add_u32 v10, s49, v15
    v_and_b32 v2, 15, v1
    v_lshrrev_b32 v3, 5, v1
    v_lshl_add_u32 v2, v3, 4, v2
    v_lshlrev_b32 v2, 4, v2
    v_add_u32 v2, 1024, v2
    v_add_u32 v3, 512, v2
    v_mov_b32 v4, 2048
    v_and_b32 v5, 16, v1
    v_cmp_ne_u32 vcc, 0, v5
    v_mov_b32 v6, 0x3f803f80
    v_mov_b32 v7, 0x3f803f80
    v_cndmask_b32 v2, v2, v4, vcc
    v_cndmask_b32 v3, v3, v4, vcc
    v_add_u32 v11, s49, v2
    v_add_u32 v12, s49, v3
    v_mov_b32 v8, 0x3f803f80
    v_mov_b32 v9, 0x3f803f80
    v_and_b32 v2, 7, v1
    v_mul_u32_u24 v2, 2064, v2
    v_add_u32 v2, s49, v2
    ds_write_b128 v2, v[6:9] offset:2048
    v_mov_b32 v13, 0xdddddddd
    """)
    for r in range(MA, MA + 32): e(f"v_mov_b32 v{r}, 0")
    e.label("LB_restart")
    e("s_mov_b32 s50, 0")
    def dma(slot):
        e(f"s_add_u32 m0, s49, {slot*2064}")
        e("s_nop 0")
        e("buffer_load_dwordx4 v15, s[4:7], s50 offen lds")
        e("buffer_load_dwordx4 v15, s[4:7], s50 offen offset:1024 lds")
        e("s_add_u32 s50, s50, 2048")
    for s in range(8): dma(s)
    for r in list(range(SB, SB + 16)) + list(range(OA, OA + 32)) + list(range(V1[1], V1[1] + 4)):
        e(f"v_mov_b32 v{r}, 0")
    e("s_waitcnt vmcnt(14)")
    e(f"ds_read_b128 {vr(K[0],4)}, v10")
    e(f"ds_read_b128 {vr(V0[0],4)}, v11")
    e(f"ds_read_b128 {vr(V1[0],4)}, v12")
    e("s_waitcnt lgkmcnt(0)")
    e(f"v_mfma_f32_32x32x16_bf16 {vr(SA,16)}, {vr(K[0],4)}, {vr(QA,4)}, {vr(MA,16)}")
    dma(0)
    e("s_mov_b32 s51, 8")
    e("s_nop 7")
    e(".p2align 6")
    e.label("LB_loop")
    def ex(S, a, b):
        for i in range(a, b): e(f"v_exp_f32 v{S+i}, v{S+i}")
    def smf(O, V, S):
        e(f"v_smfmac_f32_32x32x32_bf16 {vr(O,16)}, {vr(V,4)}, {vr(S,8)}, v13")
    for i in range(8):
        p = i & 1; q = p ^ 1
        ns = (i + 1) % 8
        ex(SA, 0, 1)
        e("s_waitcnt vmcnt(14)")
        ex(SA, 1, 2)
        smf(OB, V1[q], SB + 8)
        e(f"ds_read_b128 {vr(K[q],4)}, v10 offset:{ns*2064}")
        ex(SA, 2, 3)
        e(f"ds_read_b128 {vr(V0[q],4)}, v11 offset:{ns*2064}")
        ex(SA, 3, 4)
        e(f"ds_read_b128 {vr(V1[q],4)}, v12 offset:{ns*2064}")
        ex(SA, 4, 5)
        e(f"v_mfma_f32_32x32x16_bf16 {vr(SB,16)}, {vr(K[p],4)}, {vr(QB,4)}, {vr(MB,16)}")
        ex(SA, 5, 10)
        smf(OA, V0[p], SA)
        ex(SA, 10, 16)
        ex(SB, 0, 2)
        smf(OA, V1[p], SA + 8)
        ex(SB, 2, 4)
        e("s_waitcnt lgkmcnt(0)")
        ex(SB, 4, 5)
        e(f"v_mfma_f32_32x32x16_bf16 {vr(SA,16)}, {vr(K[q],4)}, {vr(QA,4)}, {vr(MA,16)}")
        e(f"s_add_u32 m0, s49, {ns*2064}")
        ex(SB, 5, 6)
        e("buffer_load_dwordx4 v15, s[4:7], s50 offen lds")
        ex(SB, 6, 7)
        e("buffer_load_dwordx4 v15, s[4:7], s50 offen offset:1024 lds")
        ex(SB, 7, 8)
        e("s_add_u32 s50, s50, 2048")
        ex(SB, 8, 10)
        smf(OB, V0[p], SB)
        ex(SB, 10, 14)
        if i == 7: e("s_sub_u32 s51, s51, 1")
        ex(SB, 14, 15)
        if i == 7: e("s_cmp_lg_u32 s51, 0")
        ex(SB, 15, 16)
    e("s_cbranch_scc1 LB_loop")
    e("s_nop 0")
    smf(OB, V1[1], SB + 8)
    e.c("epilogue")
    e(f"""
    s_lshl_b32 s60, s22, 16
    s_lshl_b32 s61, s58, 10
    s_add_u32 s60, s60, s61
    s_add_u32 s60, s60, {WS_OF:#x}
    s_add_u32 s61, s60, 32768
    v_rcp_f32 v2, v{OA+8}
    s_nop 0
    """)
    for j in range(8): e(f"v_mul_f32 v{OA+j}, v2, v{OA+j}")
    for j in range(4): e(f"v_cvt_pk_bf16_f32 v{4+j}, v{OA+2*j}, v{OA+2*j+1}")
    e(f"buffer_store_dwordx4 v[4:7], v15, s[8:11], s60 offen")
    e(f"v_rcp_f32 v3, v{OB+8}")
    e("s_nop 0")
    for j in range(8): e(f"v_mul_f32 v{OB+j}, v3, v{OB+j}")
    for j in range(4): e(f"v_cvt_pk_bf16_f32 v{16+j}, v{OB+2*j}, v{OB+2*j+1}")
    e(f"buffer_store_dwordx4 v[16:19], v15, s[8:11], s61 offen")
    e("s_endpgm")

    GU = MOE_LDS
    UP = GU + 16384 + 128
    DN = UP + 16384
    XS = DN + 16 * 1088
    HS = XS + 1024
    e.label("LB_moe")
    e("""
    s_cmp_ge_u32 s2, 86
    s_cbranch_scc1 LB_end
    s_load_dwordx2 s[36:37], s[0:1], 0
    s_load_dwordx4 s[40:43], s[0:1], 40
    s_load_dwordx2 s[46:47], s[0:1], 56
    v_lshrrev_b32 v2, 1, v1
    v_mul_u32_u24 v2, 2752, v2
    v_and_b32 v3, 1, v1
    v_lshl_add_u32 v10, v3, 4, v2
    s_waitcnt lgkmcnt(0)
    """)
    srd(e, 4, 36, 0x200000)
    srd(e, 8, 44, WS_SIZE)
    srd(e, 12, 40, 512 * 2752)
    srd(e, 16, 42, 512 * 2752)
    srd(e, 24, 46, 1376 * 1024)
    e(f"s_mov_b32 s52, {WS_R:#x}")
    e(f"s_mov_b32 s53, {WS_R+4096:#x}")
    for i in range(8):
        e(f"buffer_load_dwordx4 {vr(16+4*i,4)}, v15, s[8:11], s{52+i//4} offen offset:{(i%4)*1024}")
    e("s_lshl_b32 s50, s2, 5")
    for i in range(16):
        e(f"s_mov_b32 m0, {GU+i*1024}")
        e("s_nop 0")
        e("buffer_load_dwordx4 v10, s[12:15], s50 offen lds")
        e(f"s_mov_b32 m0, {UP+i*1024}")
        e("s_nop 0")
        e("buffer_load_dwordx4 v10, s[16:19], s50 offen lds")
        e(f"s_add_u32 s50, s50, {32*2752}")
    e("s_lshl_b32 s50, s2, 14")
    for i in range(16):
        e(f"s_mov_b32 m0, {DN+i*1088}")
        e("s_nop 0")
        e("buffer_load_dwordx4 v15, s[24:27], s50 offen lds")
        e("s_add_u32 s50, s50, 1024")
    e.c("argmax of r: reg 16+4i+j holds token i*256 + lane*4 + j")
    e("s_waitcnt vmcnt(48)")
    e("v_max_f32 v2, v16, v17")
    for k in range(18, 48, 2): e(f"v_max3_f32 v2, v2, v{k}, v{k+1}")
    e("s_nop 1")
    for m in ("row_shr:1 row_mask:0xf", "row_shr:2 row_mask:0xf", "row_shr:4 row_mask:0xf", "row_shr:8 row_mask:0xf",
              "row_bcast:15 row_mask:0xa", "row_bcast:31 row_mask:0xc"):
        e(f"v_max_f32_dpp v2, v2, v2 {m} bank_mask:0xf")
        e("s_nop 1")
    e("v_readlane_b32 s54, v2, 63")
    e("v_mov_b32 v3, 0x7fff")
    e("s_nop 1")
    for k in range(31, -1, -1):
        e(f"v_cmp_eq_f32 vcc, s54, v{16+k}")
        e(f"v_mov_b32 v4, {(k//4)*256 + k%4}")
        e("s_nop 0")
        e("v_cndmask_b32 v3, v3, v4, vcc")
    e("v_lshl_add_u32 v3, v1, 2, v3")
    e("s_nop 1")
    for m in ("row_shr:1 row_mask:0xf", "row_shr:2 row_mask:0xf", "row_shr:4 row_mask:0xf", "row_shr:8 row_mask:0xf",
              "row_bcast:15 row_mask:0xa", "row_bcast:31 row_mask:0xc"):
        e(f"v_min_u32_dpp v3, v3, v3 {m} bank_mask:0xf")
        e("s_nop 1")
    e(f"""
    v_readlane_b32 s55, v3, 63
    s_nop 3
    s_min_u32 s55, s55, 2047
    s_lshl_b32 s56, s55, 10
    s_mov_b32 m0, {XS}
    s_nop 4
    buffer_load_dwordx4 v15, s[4:7], s56 offen lds
    v_bfe_u32 v4, v1, 4, 1
    v_lshrrev_b32 v5, 5, v1
    v_and_b32 v6, 15, v1
    v_mul_u32_u24 v7, {UP-GU}, v4
    v_lshl_add_u32 v7, v5, 8, v7
    v_lshl_add_u32 v7, v6, 3, v7
    v_add_u32 v11, {GU}, v7
    v_lshlrev_b32 v12, 4, v5
    v_add_u32 v12, {XS}, v12
    v_bfe_u32 v7, v1, 2, 2
    v_lshl_add_u32 v7, v5, 3, v7
    v_mul_u32_u24 v7, 1088, v7
    v_lshl_add_u32 v7, v4, 5, v7
    v_and_b32 v8, 3, v1
    v_lshl_add_u32 v7, v8, 3, v7
    v_add_u32 v13, {DN}, v7
    s_waitcnt vmcnt(0)
    """)
    for g in range(8):
        for k in range(4):
            ks = 4 * g + k
            f = 64 + 8 * k
            e(f"ds_read_b128 {vr(f,4)}, v12 offset:{ks*32}")
            e(f"ds_read_b64_tr_b16 {vr(f+4,2)}, v11 offset:{ks*512}")
            e(f"ds_read_b64_tr_b16 {vr(f+6,2)}, v11 offset:{ks*512+128}")
        for k in range(4):
            f = 64 + 8 * k
            e(f"s_waitcnt lgkmcnt({9-3*k})")
            e(f"v_mfma_f32_32x32x16_bf16 v[48:63], {vr(f,4)}, {vr(f+4,4)}, {'0' if (g==0 and k==0) else 'v[48:63]'}")
    e(f"""
    s_nop 15
    v_permlane16_swap_b32 v48, v49
    s_nop 1
    v_mul_f32 v2, 0x{0x80000000|LOG2E:x}, v48
    v_exp_f32 v2, v2
    s_nop 0
    v_add_f32 v2, 1.0, v2
    v_rcp_f32 v2, v2
    s_nop 0
    v_mul_f32 v2, v2, v48
    v_mul_f32 v2, v2, v49
    v_cvt_pk_bf16_f32 v2, v2, v2
    v_lshlrev_b32 v3, 1, v6
    v_add_u32 v3, {HS}, v3
    ds_write_b16 v3, v2
    v_add_u32 v12, {HS-XS}, v12
    s_waitcnt lgkmcnt(0)
    ds_read_b128 v[16:19], v12
    """)
    for g in range(4):
        for k in range(4):
            t = 4 * g + k
            e(f"ds_read_b64_tr_b16 {vr(20+4*k,2)}, v13 offset:{t*64}")
            e(f"ds_read_b64_tr_b16 {vr(22+4*k,2)}, v13 offset:{t*64+4*1088}")
        for k in range(4):
            e(f"s_waitcnt lgkmcnt({6-2*k})")
            e(f"v_mfma_f32_32x32x16_bf16 {vr(64+16*k,16)}, v[16:19], {vr(20+4*k,4)}, 0")
        e("s_nop 11")
        for k in range(4):
            e(f"v_mov_b32 v{36+4*g+k}, v{64+16*k}")
    e(f"""
    v_and_b32 v3, 31, v1
    v_lshlrev_b32 v3, 2, v3
    s_mov_b32 s57, {WS_Y:#x}
    s_mov_b64 exec, 0xffffffff
    """)
    for t in range(16):
        e(f"buffer_atomic_add_f32 v{36+t}, v3, s[8:11], s57 offen offset:{t*128}")
    e(f"""
    s_cmp_lg_u32 s2, 0
    s_cbranch_scc1 LB_end
    v_mov_b32 v4, s55
    v_mov_b32 v5, s54
    v_mov_b32 v3, 0
    s_mov_b32 s57, {WS_IX:#x}
    s_mov_b64 exec, 1
    buffer_store_dwordx2 v[4:5], v3, s[8:11], s57 offen
    """)
    e.label("LB_end")
    e("s_endpgm")
    return HS + 64

def outp(e):
    head(e, "out_kernel")
    e("""
    s_cmp_ge_u32 s2, 256
    s_cbranch_scc1 LC_end
    s_load_dwordx2 s[36:37], s[0:1], 0
    s_load_dwordx2 s[38:39], s[0:1], 16
    s_load_dwordx2 s[40:41], s[0:1], 72
    s_load_dwordx2 s[44:45], s[0:1], 88
    v_lshrrev_b32 v2, 6, v0
    v_and_b32 v1, 63, v0
    v_readfirstlane_b32 s20, v2
    s_and_b32 s21, s2, 7
    s_lshl_b32 s21, s21, 2
    s_bfe_u32 s23, s2, 0x20003
    s_add_u32 s21, s21, s23
    s_lshr_b32 s22, s2, 5
    v_lshlrev_b32 v15, 4, v1
    v_lshrrev_b32 v2, 3, v1
    v_and_b32 v3, 7, v1
    v_bfe_u32 v4, v1, 4, 1
    v_lshlrev_b32 v4, 2, v4
    v_xor_b32 v3, v3, v4
    v_lshlrev_b32 v3, 4, v3
    v_lshl_add_u32 v10, v2, 10, v3
    v_add_u32 v11, 7168, v10
    s_waitcnt lgkmcnt(0)
    """)
    e(f"s_add_u32 s46, s44, {WS_IX:#x}")
    e("s_addc_u32 s47, s45, 0")
    e("s_load_dwordx2 s[48:49], s[46:47], 0")
    srd(e, 4, 36, 0x200000)
    srd(e, 8, 38, 0x80000)
    srd(e, 12, 44, WS_SIZE)
    srd(e, 16, 40, 0x200000)
    e(f"""
    s_and_b32 s24, s20, 1
    s_lshr_b32 s25, s20, 1
    s_lshl_b32 s50, s20, 15
    s_lshl_b32 s51, s22, 7
    s_add_u32 s50, s50, s51
    s_lshl_b32 s52, s21, 16
    s_lshl_b32 s53, s20, 11
    s_add_u32 s52, s52, s53
    s_add_u32 s52, s52, {WS_OF - 2048:#x}
    s_add_u32 s53, s52, {32768 - 1024}
    s_lshl_b32 s54, s20, 13
    """)
    e.c("x rows / g (uncoalesced, issued first)")
    e(f"""
    v_and_b32 v2, 31, v1
    v_lshrrev_b32 v3, 5, v1
    s_lshl_b32 s26, s21, 6
    s_lshl_b32 s27, s24, 5
    s_add_u32 s26, s26, s27
    v_add_u32 v12, s26, v2
    v_lshlrev_b32 v13, 10, v12
    v_lshl_add_u32 v13, v3, 5, v13
    s_lshl_b32 s28, s25, 6
    s_add_u32 s28, s28, s51
    v_lshlrev_b32 v14, 2, v12
    s_mov_b32 s29, {WS_G:#x}
    buffer_load_dwordx4 v[16:19], v13, s[4:7], s28 offen
    buffer_load_dwordx4 v[20:23], v13, s[4:7], s28 offen offset:16
    buffer_load_dword v24, v14, s[12:15], s29 offen
    """)
    for q in range(4):
        for j in range(2):
            e(f"s_add_u32 m0, s54, {q*32768 + j*4096}")
            e("s_nop 0")
            e("buffer_load_dwordx4 v10, s[8:11], s50 offen lds")
            e("buffer_load_dwordx4 v11, s[8:11], s50 offen offset:1024 lds")
            e("buffer_load_dwordx4 v15, s[12:15], s52 offen offset:2048 lds")
            e("buffer_load_dwordx4 v15, s[12:15], s53 offen offset:3072 lds")
            if j == 0:
                e("s_add_u32 s50, s50, 16384\ns_add_u32 s52, s52, 1024\ns_add_u32 s53, s53, 1024")
            else:
                e(f"s_add_u32 s50, s50, {7*16384}\ns_add_u32 s52, s52, {7*1024}\ns_add_u32 s53, s53, {7*1024}")
    e.c("LDS read addresses: v25 = wo tr, v26 = O frag")
    e("""
    v_bfe_u32 v4, v1, 4, 1
    v_bfe_u32 v5, v1, 2, 2
    v_and_b32 v6, 1, v1
    v_bfe_u32 v7, v1, 1, 1
    v_bfe_u32 v8, v1, 3, 1
    v_xor_b32 v8, s25, v8
    v_lshlrev_b32 v9, 6, v8
    v_lshl_add_u32 v9, v6, 5, v9
    v_lshl_add_u32 v9, v4, 4, v9
    v_lshl_add_u32 v9, v7, 3, v9
    v_lshl_add_u32 v9, v5, 7, v9
    v_lshl_add_u32 v25, v3, 9, v9
    s_lshl_b32 s30, s24, 10
    s_add_u32 s30, s30, 2048
    v_add_u32 v26, s30, v15
    """)
    for q in range(4):
        if q == 2:
            e("v_add_u32 v25, 0x10000, v25\nv_add_u32 v26, 0x10000, v26")
        e(f"s_waitcnt vmcnt({8*(3-q)})")
        e("s_barrier")
        so = (q % 2) * 32768
        def rd(h):
            f = 48 + 8 * (h % 8)
            e(f"ds_read_b64_tr_b16 {vr(f,2)}, v25 offset:{so+h*4096}")
            e(f"ds_read_b64_tr_b16 {vr(f+2,2)}, v25 offset:{so+h*4096+1024}")
            e(f"ds_read_b128 {vr(f+4,4)}, v26 offset:{so+h*4096}")
        for h in range(4): rd(h)
        for h in range(8):
            f = 48 + 8 * h
            e(f"s_waitcnt lgkmcnt({3*min(3, 7-h)})")
            e(f"v_mfma_f32_32x32x16_bf16 v[32:47], {vr(f,4)}, {vr(f+4,4)}, {'0' if (q==0 and h==0) else 'v[32:47]'}")
            if h + 4 < 8: rd(h + 4)
    e.c("epilogue: out = g*a + (1-g)*(x + [row==idx] * sigmoid(r) * y)")
    for j in range(8):
        e(f"v_lshlrev_b32 v{48+2*j}, 16, v{16+j}")
        e(f"v_and_b32 v{49+2*j}, 0xffff0000, v{16+j}")
    e(f"""
    s_lshr_b32 s31, s48, 5
    s_lshr_b32 s32, s26, 5
    s_cmp_lg_u32 s31, s32
    s_cbranch_scc1 LC_nomoe
    v_cmp_eq_u32 vcc, s48, v12
    v_lshlrev_b32 v4, 6, v3
    s_lshl_b32 s33, s28, 1
    s_add_u32 s33, s33, {WS_Y:#x}
    v_mov_b32 v5, s49
    v_mul_f32 v5, 0x{0x80000000|LOG2E:x}, v5
    v_exp_f32 v5, v5
    s_nop 0
    v_add_f32 v5, 1.0, v5
    v_rcp_f32 v5, v5
    s_and_saveexec_b64 s[34:35], vcc
    buffer_load_dwordx4 v[64:67], v4, s[12:15], s33 offen
    buffer_load_dwordx4 v[68:71], v4, s[12:15], s33 offen offset:16
    buffer_load_dwordx4 v[72:75], v4, s[12:15], s33 offen offset:32
    buffer_load_dwordx4 v[76:79], v4, s[12:15], s33 offen offset:48
    s_waitcnt vmcnt(0)
    """)
    for j in range(16): e(f"v_fmac_f32 v{48+j}, v5, v{64+j}")
    e("s_mov_b64 exec, s[34:35]")
    e.label("LC_nomoe")
    for j in range(16): e(f"v_sub_f32 v{32+j}, v{32+j}, v{48+j}")
    for j in range(16): e(f"v_fmac_f32 v{48+j}, v24, v{32+j}")
    for j in range(8): e(f"v_cvt_pk_bf16_f32 v{16+j}, v{48+2*j}, v{49+2*j}")
    e("buffer_store_dwordx4 v[16:19], v13, s[16:19], s28 offen")
    e("buffer_store_dwordx4 v[20:23], v13, s[16:19], s28 offen offset:16")
    e.label("LC_end")
    e("s_endpgm")

def main(path, extra_empty=0):
    e = Asm()
    proj(e)
    ldsB = attn(e)
    outp(e)
    if extra_empty:
        head(e, "empty_kernel"); e("s_endpgm")
    body = e.text()
    probs = check_text(body)
    for p in probs: print("HAZARD", p)
    hdr = f"""; gated mix of MHA block and MoD (top-1) FFN branch, gfx950.  Generated by gen/gen_v1.py (hand-written generator).
; @launch kernel=proj_kernel grid=(256,1,1) block=(256,1,1) lds=131072
; @launch kernel=attn_kernel grid=(256,1,1) block=(320,1,1) lds={ldsB}
; @launch kernel=out_kernel grid=(256,1,1) block=(256,1,1) lds=131072
"""
    for i in range(extra_empty):
        hdr += "; @launch kernel=empty_kernel grid=(256,1,1) block=(256,1,1) lds=0\n"
    hdr += '.amdgcn_target "amdgcn-amd-amdhsa--gfx950"\n.text\n'
    tail = '.section .rodata,"a"\n.p2align 6\n' + kd("proj_kernel", 160, 80) + ".p2align 6\n" + kd("attn_kernel", 144, 80) + ".p2align 6\n" + kd("out_kernel", 112, 80)
    if extra_empty: tail += ".p2align 6\n" + kd("empty_kernel", 8, 16)
    open(path, "w").write(hdr + body + tail)

if __name__ == "__main__":
    main(sys.argv[1] if len(sys.argv) > 1 else f"cdna_kernels/{NAME}.s", int(sys.argv[2]) if len(sys.argv) > 2 else 0)
```

```python
import sys
from asmlib import *

NAME = "gated_mix__mha_block__moe_arch_mod__prompt"
OPT = {}
HS     = 0x20000
WS_KV  = 0x000000
WS_OF  = 0x600000
WS_G   = 0x802000
WS_Y   = 0x804000
WS_RP  = 0x806000
WS_EP  = 0x808000
WS_C1  = 0x810000
WS_C2  = 0x811000
WS_DBG = 0x880000
WS_SIZE = 0x900000
QSCALE = 0x3EB8AA3B
NLOG2E = 0xBFB8AA3B
NMOE = 86
L_X = 0; L_W = 65536
SLOT = 2080; SSTR = 8 * SLOT
L_R = 131072 - 3 * SSTR
def ringoff(s): return ((s + 3) % 4) * SSTR
L_QX = 131072 + SSTR
L_MS = L_QX + 8192
LDS_TOTAL = 163840
POLL_MAX = 1 << 17

INSTR = False
def stamp(e, i):
    if INSTR: e(f"s_memtime s[{70+2*i}:{71+2*i}]")
def stamp_init(e):
    if INSTR:
        e("s_memrealtime s[90:91]")
        for i in range(10): e(f"s_mov_b64 s[{70+2*i}:{71+2*i}], 0")
        stamp(e, 0)
def stamp_out(e):
    if not INSTR: return
    e("s_waitcnt vmcnt(0)")
    stamp(e, 9)
    e("s_memrealtime s[92:93]")
    e("s_waitcnt lgkmcnt(0)")
    e("s_mov_b64 exec, 1")
    e("s_lshl_b32 s96, s2, 4\ns_add_u32 s96, s96, s20\ns_lshl_b32 s96, s96, 6")
    e(f"s_add_u32 s96, s96, {WS_DBG:#x}")
    for i in range(10): e(f"v_mov_b32 v{4+i}, s{70+2*i}")
    e("v_mov_b32 v14, s90\nv_mov_b32 v15, s92\nv_mov_b32 v2, 0")
    for i in range(3): e(f"buffer_store_dwordx4 v[{4+4*i}:{7+4*i}], v2, s[12:15], s96 offen offset:{16*i}")

def srd(e, d, base, size):
    e(f"s_mov_b32 s{d}, s{base}\ns_mov_b32 s{d+1}, s{base+1}\ns_mov_b32 s{d+2}, {size:#x}\ns_mov_b32 s{d+3}, 0x20000")

DPP6 = ("row_shr:1 row_mask:0xf", "row_shr:2 row_mask:0xf", "row_shr:4 row_mask:0xf", "row_shr:8 row_mask:0xf",
        "row_bcast:15 row_mask:0xa", "row_bcast:31 row_mask:0xc")
P_X, P_WQKV, P_WO, P_WR, P_WG, P_WU, P_WD, P_GW, P_OUT, P_DBG, P_WS = 36, 38, 40, 44, 46, 48, 50, 52, 54, 56, 58

def poll(e, name, load, cmp_, sleep=0, narrow=True):
    e("s_mov_b32 s61, 0")
    e.label(f"L_{name}")
    e(load)
    e(f"s_add_u32 s61, s61, 1\ns_cmp_gt_u32 s61, {POLL_MAX}\ns_cbranch_scc1 L_{name}_x")
    e("s_waitcnt vmcnt(0)")
    e(cmp_)
    e(f"s_cbranch_vccz L_{name}_x")
    if narrow: e("s_mov_b64 exec, vcc")
    if sleep: e(f"s_sleep {sleep}")
    e(f"s_branch L_{name}")
    e.label(f"L_{name}_x")
    e("s_waitcnt vmcnt(0)")

def entry(e):
    e("""
    s_cmp_ge_u32 s2, 256
    s_cbranch_scc1 L_end
    """)
    stamp_init(e)
    e("""
    s_load_dwordx16 s[36:51], s[0:1], 0
    s_load_dwordx8 s[52:59], s[0:1], 64
    v_lshrrev_b32 v2, 6, v0
    v_and_b32 v1, 63, v0
    v_readfirstlane_b32 s20, v2
    s_and_b32 s28, s2, 7
    s_lshr_b32 s29, s2, 3
    s_and_b32 s21, s28, 1
    s_lshl_b32 s21, s21, 2
    s_and_b32 s30, s29, 3
    s_add_u32 s21, s21, s30
    s_lshr_b32 s22, s28, 1
    s_lshl_b32 s22, s22, 3
    s_lshr_b32 s31, s29, 2
    s_add_u32 s22, s22, s31
    s_lshl_b32 s23, s30, 1
    s_add_u32 s23, s23, s31
    s_lshl_b32 s68, s28, 2
    s_add_u32 s68, s68, s30
    s_mov_b32 s69, s31
    v_lshlrev_b32 v15, 4, v1
    s_cmp_lt_u32 s20, 4
    s_cbranch_scc1 L_comp
    s_cmp_eq_u32 s20, 8
    s_cbranch_scc1 L_help
    """)

def common_srd(e):
    e("s_waitcnt lgkmcnt(0)")
    srd(e, 4, P_X, 0x200000)
    srd(e, 12, P_WS, WS_SIZE)
def epoch_load(e):
    e(f"s_add_u32 s62, s{P_WS}, {WS_EP:#x}\ns_addc_u32 s63, s{P_WS+1}, 0\ns_load_dword s60, s[62:63], 0")
def epoch_tag(e):
    e("s_waitcnt lgkmcnt(0)\ns_mul_i32 s60, s60, 0x9E3779B1\ns_add_u32 s60, s60, 0x7F4A7C15")

def producer(e):
    e("""
    v_lshrrev_b32 v2, 3, v1
    v_and_b32 v3, 7, v1
    v_lshrrev_b32 v4, 4, v1
    v_xor_b32 v5, v3, v4
    v_lshlrev_b32 v5, 4, v5
    v_lshl_add_u32 v10, v2, 10, v5
    v_xor_b32 v11, 64, v10
    v_add_u32 v11, 7168, v11
    v_and_b32 v4, 1, v4
    v_mul_u32_u24 v6, 3072, v2
    v_lshlrev_b32 v7, 2, v4
    v_xor_b32 v7, v3, v7
    v_lshl_add_u32 v12, v7, 4, v6
    s_sub_u32 s24, s20, 4
    s_lshl_b32 s25, s22, 16
    s_lshl_b32 s26, s24, 14
    s_add_u32 s25, s25, s26
    s_mul_i32 s26, s24, 49152
    s_lshl_b32 s27, s21, 7
    s_add_u32 s26, s26, s27
    s_lshl_b32 s27, s24, 11
    s_lshl_b32 s28, s24, 12
    """)
    common_srd(e)
    srd(e, 8, P_WQKV, 0x180000)
    def issue(c):
        if c < 8:
            e(f"""
            s_add_u32 s30, s23, {c}
            s_and_b32 s30, s30, 7
            s_lshl_b32 s31, s30, 7
            s_add_u32 s31, s31, s25
            s_mul_i32 s32, s30, 196608
            s_add_u32 m0, s27, {L_X + c*8192}
            s_add_u32 s32, s32, s26
            buffer_load_dwordx4 v10, s[4:7], s31 offen lds
            buffer_load_dwordx4 v11, s[4:7], s31 offen offset:1024 lds
            s_add_u32 s33, s32, {1024 + 24576 - 2048}
            s_add_u32 m0, s28, {L_W + (c%4)*16384}
            s_add_u32 s32, s32, 1024
            buffer_load_dwordx4 v12, s[8:11], s32 offen lds
            buffer_load_dwordx4 v12, s[8:11], s32 offen offset:1024 lds
            buffer_load_dwordx4 v12, s[8:11], s33 offen offset:2048 lds
            buffer_load_dwordx4 v12, s[8:11], s33 offen offset:3072 lds
            """)
        else:
            for cc in (2*(c-8), 2*(c-8)+1):
                e(f"""
                s_add_u32 s30, s23, {cc}
                s_and_b32 s30, s30, 7
                s_mul_i32 s32, s30, 196608
                s_add_u32 s32, s32, s26
                s_add_u32 m0, s27, {L_W + (c%4)*16384 + (cc%2)*8192}
                s_add_u32 s33, s32, {24576 - 1024}
                buffer_load_dwordx4 v12, s[8:11], s32 offen lds
                buffer_load_dwordx4 v12, s[8:11], s33 offen offset:1024 lds
                """)
    n = lambda c: 6 if c < 8 else 4
    D = int(OPT.get("D", 2)); D0 = int(OPT.get("D0", 2))
    issued = 0
    while issued < D0: issue(issued); issued += 1
    epoch_load(e)
    for c in range(8):
        e(f"s_waitcnt vmcnt({sum(n(k) for k in range(c+1, issued))})")
        e("s_barrier")
        if c == 0: stamp(e, 1)
        tgt = min(8 if OPT.get("q8late") else 9, c + 1 + D)
        while issued < tgt:
            issue(issued); issued += 1
    e("s_barrier")
    while issued < 12 and not OPT.get("qlate"):
        issue(issued); issued += 1
    epoch_tag(e)
    stamp(e, 2)
    e("s_barrier")
    while issued < 12:
        issue(issued); issued += 1
    stamp(e, 3)
    e("s_waitcnt vmcnt(0)")
    stamp(e, 4)
    e("s_barrier")
    stamp(e, 5)
    e("s_branch L_b11")

def compute(e):
    e.label("L_comp")
    AK, AV, AQ, F = 16, 32, 48, 64
    e("""
    s_and_b32 s24, s20, 1
    s_and_b32 s25, s20, 2
    v_and_b32 v2, 31, v1
    v_lshrrev_b32 v3, 5, v1
    v_lshlrev_b32 v4, 7, v2
    s_lshl_b32 s26, s24, 12
    v_add_u32 v4, s26, v4
    v_bfe_u32 v5, v2, 1, 3
    v_xor_b32 v5, v5, v3
    """)
    for ks in range(4):
        e(f"v_xor_b32 v6, {2*ks}, v5\nv_lshl_add_u32 v{8+ks}, v6, 4, v4")
    e(f"""
    v_bfe_u32 v4, v1, 4, 1
    v_bfe_u32 v5, v1, 2, 2
    v_and_b32 v6, 3, v1
    v_bfe_u32 v7, v1, 3, 1
    v_lshlrev_b32 v7, 1, v7
    v_xor_b32 v7, v7, v4
    v_xor_b32 v7, s25, v7
    v_lshlrev_b32 v7, 5, v7
    v_lshl_add_u32 v7, v5, 7, v7
    v_lshl_add_u32 v7, v6, 3, v7
    v_add_u32 v7, {L_W}, v7
    v_lshl_add_u32 v12, v3, 11, v7
    v_lshl_add_u32 v13, v3, 10, v7
    """)
    common_srd(e)
    epoch_load(e)
    epoch_tag(e)
    def rd(c, ks):
        f = F + 48 * (c % 2) + 12 * ks
        o = (c % 4) * 16384 + ks * 4096
        e(f"ds_read_b128 {vr(f,4)}, v{8+ks} offset:{c*8192}")
        e(f"ds_read_b64_tr_b16 {vr(f+4,2)}, v12 offset:{o}")
        e(f"ds_read_b64_tr_b16 {vr(f+6,2)}, v12 offset:{o+512}")
        e(f"ds_read_b64_tr_b16 {vr(f+8,2)}, v12 offset:{o+1024}")
        e(f"ds_read_b64_tr_b16 {vr(f+10,2)}, v12 offset:{o+1536}")
    def mf(c, ks):
        f = F + 48 * (c % 2) + 12 * ks
        z = (c == 0 and ks == 0)
        e(f"v_mfma_f32_32x32x16_bf16 {vr(AK,16)}, {vr(f+4,4)}, {vr(f,4)}, {'0' if z else vr(AK,16)}")
        e(f"v_mfma_f32_32x32x16_bf16 {vr(AV,16)}, {vr(f,4)}, {vr(f+8,4)}, {'0' if z else vr(AV,16)}")
    e.c("K/V epilogue: publish (write-through) and stage own tiles in ring slot 0")
    e(f"""
    s_lshl_b32 s26, s21, 2
    s_add_u32 s26, s26, s25
    s_mul_i32 s26, s26, {HS}
    s_lshl_b32 s27, s22, 1
    s_add_u32 s27, s27, s24
    s_lshl_b32 s27, s27, 11
    s_add_u32 s26, s26, s27
    s_add_u32 s27, s26, {HS}
    s_lshl_b32 s28, s24, 2
    s_add_u32 s28, s28, s25
    s_mul_i32 s28, s28, {SLOT}
    s_add_u32 s28, s28, {L_R + ringoff(0)}
    v_mov_b32 v6, v15
    v_and_b32 v7, 15, v1
    v_lshlrev_b32 v7, 4, v7
    v_lshl_add_u32 v7, v3, 8, v7
    v_mul_u32_u24 v5, {SLOT}, v4
    v_add3_u32 v5, v5, v7, s28
    v_mul_u32_u24 v2, {HS}, v4
    v_add_u32 v7, v7, v2
    v_add_u32 v2, s28, v6
    """)
    for c in range(8):
        e("s_barrier")
        if c == 0: stamp(e, 1)
        if c == 7: stamp(e, 2)
        rd(c, 0); rd(c, 1)
        if c > 0: mf(c - 1, 2)
        rd(c, 2)
        if c > 0: mf(c - 1, 3)
        e("s_waitcnt lgkmcnt(10)")
        rd(c, 3)
        mf(c, 0)
        e("s_waitcnt lgkmcnt(10)")
        mf(c, 1)
        if c < 7: e("s_waitcnt lgkmcnt(0)")
    e("s_waitcnt lgkmcnt(5)")
    mf(7, 2)
    e("s_waitcnt lgkmcnt(0)")
    mf(7, 3)
    e("s_nop 10")
    T = F + 96 - 16
    T = F
    KF = OPT.get("kf", "sc1").replace("+", " ").replace("none", "")
    for j in range(8): e(f"v_cvt_pk_bf16_f32 v{T+j}, v{AK+2*j}, v{AK+2*j+1}")
    e(f"buffer_store_dwordx4 {vr(T,4)}, v6, s[12:15], s26 offen {KF}")
    e(f"buffer_store_dwordx4 {vr(T+4,4)}, v6, s[12:15], s27 offen {KF}")
    for j in range(8): e(f"v_cvt_pk_bf16_f32 v{T+8+j}, v{AV+2*j}, v{AV+2*j+1}")
    e(f"buffer_store_dwordx4 {vr(T+8,4)}, v7, s[12:15], s26 offen offset:1024 {KF}")
    e(f"buffer_store_dwordx4 {vr(T+12,4)}, v7, s[12:15], s26 offen offset:1536 {KF}")
    e(f"ds_write_b128 v2, {vr(T,4)}")
    e(f"ds_write_b128 v2, {vr(T+4,4)} offset:{SLOT}")
    e(f"ds_write_b128 v5, {vr(T+8,4)} offset:1024")
    e(f"ds_write_b128 v5, {vr(T+12,4)} offset:1536")
    stamp(e, 3)
    e.c("Q projection")
    FQ = F + 16
    def rdq(cc, ks):
        f = FQ + 32 * (cc % 2) + 8 * ks
        o = ((8 + cc // 2) % 4) * 16384 + (cc % 2) * 8192 + ks * 2048
        e(f"ds_read_b128 {vr(f,4)}, v{8+ks} offset:{cc*8192}")
        e(f"ds_read_b64_tr_b16 {vr(f+4,2)}, v13 offset:{o}")
        e(f"ds_read_b64_tr_b16 {vr(f+6,2)}, v13 offset:{o+512}")
    def mfq(cc, ks):
        f = FQ + 32 * (cc % 2) + 8 * ks
        z = (cc == 0 and ks == 0)
        e(f"v_mfma_f32_32x32x16_bf16 {vr(AQ,16)}, {vr(f+4,4)}, {vr(f,4)}, {'0' if z else vr(AQ,16)}")
    e("s_barrier")
    e(f"""
    v_and_b32 v2, 31, v1
    s_lshl_b32 s27, s24, 5
    v_add_u32 v2, s27, v2
    v_lshlrev_b32 v2, 10, v2
    v_lshl_add_u32 v2, v3, 5, v2
    s_lshl_b32 s28, s25, 5
    s_lshl_b32 s29, s69, 7
    s_add_u32 s28, s28, s29
    s_lshl_b32 s29, s68, 16
    s_add_u32 s28, s28, s29
    s_waitcnt vmcnt(0) lgkmcnt(0)
    """)
    stamp(e, 4)
    e("""
    s_barrier
    buffer_load_dwordx4 v[144:147], v2, s[4:7], s28 offen
    buffer_load_dwordx4 v[148:151], v2, s[4:7], s28 offen offset:16
    """)
    e("s_barrier")
    for ks in range(4): rdq(0, ks)
    for cc in range(8):
        for ks in range(4):
            e(f"s_waitcnt lgkmcnt({9 if cc < 7 else 3*(3-ks)})")
            mfq(cc, ks)
            if cc < 7: rdq(cc + 1, ks)
    e(f"""
    s_lshl_b32 s26, s25, 11
    s_lshl_b32 s27, s24, 10
    s_add_u32 s26, s26, s27
    s_add_u32 s26, s26, {L_QX}
    v_add_u32 v2, s26, v15
    s_mov_b32 s27, {QSCALE:#x}
    s_nop 7
    """)
    for j in range(16): e(f"v_mul_f32 v{AQ+j}, s27, v{AQ+j}")
    for j in range(8): e(f"v_cvt_pk_bf16_f32 v{AK+j}, v{AQ+2*j}, v{AQ+2*j+1}")
    e(f"ds_write_b128 v2, {vr(AK,4)}")
    e(f"ds_write_b128 v2, {vr(AK+4,4)} offset:2048")
    stamp(e, 5)
    e("s_waitcnt lgkmcnt(0)")

SCHED = ("e2 S0p e3 S1 e3 M e3 wv rk e1 r0 e1 r1 e1 pr e2", "e2 S0p e3 S1 e3 wl M e3 oc os m0 e1 dk e1 dv e1 sa sn lc lt e2")
def attention(e):
    SA, SB, OA, OB = 16, 32, 48, 64
    QA, QB = 80, 84
    K = (88, 92); V0 = (96, 100); V1 = (104, 108)
    e.label("L_b11")
    e(f"""
    s_and_b32 s24, s20, 3
    s_lshr_b32 s25, s20, 2
    s_lshl_b32 s26, s21, 2
    s_add_u32 s26, s26, s24
    s_mul_i32 s27, s26, {HS}
    s_add_u32 s8, s{P_WS}, s27
    s_addc_u32 s9, s{P_WS+1}, 0
    s_mov_b32 s10, 0x20000
    s_mov_b32 s11, 0x20000
    s_mul_i32 s28, s20, {SLOT}
    s_add_u32 s28, s28, {L_R}
    s_lshl_b32 s29, s24, 11
    s_add_u32 s29, s29, {L_QX}
    v_and_b32 v2, 0x33, v1
    v_bfe_u32 v3, v1, 2, 1
    v_lshl_or_b32 v2, v3, 3, v2
    v_bfe_u32 v3, v1, 3, 1
    v_lshl_or_b32 v2, v3, 2, v2
    v_lshlrev_b32 v112, 4, v2
    v_add_u32 v10, s28, v112
    v_and_b32 v2, 15, v1
    v_lshrrev_b32 v3, 5, v1
    v_lshl_add_u32 v2, v3, 4, v2
    v_lshlrev_b32 v14, 4, v2
    v_add_u32 v2, 1024, v14
    v_add_u32 v3, 1536, v14
    v_and_b32 v5, 27, v1
    v_cmp_eq_u32 s[30:31], 16, v5
    v_mov_b32 v4, 2064
    v_mov_b32 v5, 2048
    v_cndmask_b32 v4, v4, v5, s[30:31]
    v_and_b32 v5, 16, v1
    v_cmp_ne_u32 vcc, 0, v5
    v_mov_b32 v6, 0x3f803f80
    v_mov_b32 v7, 0x3f803f80
    v_cndmask_b32 v2, v2, v4, vcc
    v_cndmask_b32 v3, v3, v4, vcc
    v_add_u32 v11, s28, v2
    v_add_u32 v12, s28, v3
    v_mov_b32 v8, 0x3f803f80
    v_mov_b32 v9, 0x3f803f80
    v_and_b32 v2, 3, v1
    v_mul_u32_u24 v2, {SSTR}, v2
    v_add_u32 v2, s28, v2
    v_add_u32 v3, s29, v15
    v_mov_b32 v13, 0xdddddddd
    s_add_u32 s32, s22, 1
    s_lshl_b32 s32, s32, 12
    s_lshl_b32 s33, s25, 11
    s_add_u32 s32, s32, s33
    s_and_b32 s32, s32, 0x1ffff
    s_mov_b32 s33, 8
    """)
    for r in list(range(SB, SB + 16)) + list(range(OA, OA + 32)) + list(range(V1[1], V1[1] + 4)) + list(range(V0[1], V0[1] + 4)):
        e(f"v_mov_b32 v{r}, 0")
    e("s_barrier")
    stamp(e, 6)
    e(f"""
    ds_write_b128 v2, v[6:9] offset:2048
    ds_write_b128 v2, {vr(OA,4)} offset:2064
    ds_read_b128 {vr(QA,4)}, v3
    ds_read_b128 {vr(K[0],4)}, v10 offset:{ringoff(0)}
    ds_read_b128 {vr(QB,4)}, v3 offset:1024
    ds_read_b128 {vr(V0[0],4)}, v11 offset:{ringoff(0)}
    ds_read_b128 {vr(V1[0],4)}, v12 offset:{ringoff(0)}
    """)
    for s in (1, 2, 3, 0):
        if s == 0:
            e("s_waitcnt lgkmcnt(0)")
            e(f"v_mfma_f32_32x32x16_bf16 {vr(SA,16)}, {vr(K[0],4)}, {vr(QA,4)}, 0")
        e(f"""
        s_add_u32 m0, s28, {ringoff(s)}
        s_nop 0
        buffer_load_dwordx4 v15, s[8:11], s32 offen sc1 lds
        buffer_load_dwordx4 v15, s[8:11], s32 offen offset:1024 sc1 lds
        s_add_u32 s32, s32, 4096
        s_and_b32 s32, s32, 0x1ffff
        """)
    e("s_nop 5")
    if INSTR: e("s_waitcnt lgkmcnt(0)")
    e(".p2align 6")
    e.label("L_loop")
    def ex(S, a, b):
        for i in range(a, b): e(f"v_exp_f32 v{S+i}, v{S+i}")
    def smf(O, V, S):
        e(f"v_smfmac_f32_32x32x32_bf16 {vr(O,16)}, {vr(V,4)}, {vr(S,8)}, v13")
    for i in range(4):
        p = i & 1; q = p ^ 1
        ro = ringoff((i + 1) % 4)
        T = {
          "pr": f"s_setprio {3-i}",
          "wv": "s_waitcnt vmcnt(6)", "wl": "s_waitcnt lgkmcnt(0)",
          "rk": f"ds_read_b128 {vr(K[q],4)}, v10 offset:{ro}",
          "r0": f"ds_read_b128 {vr(V0[q],4)}, v11 offset:{ro}",
          "r1": f"ds_read_b128 {vr(V1[q],4)}, v12 offset:{ro}",
          "m0": f"s_add_u32 m0, s28, {ro}",
          "dk": "buffer_load_dwordx4 v15, s[8:11], s32 offen sc1 lds",
          "dv": "buffer_load_dwordx4 v15, s[8:11], s32 offen offset:1024 sc1 lds",
          "sa": "s_add_u32 s32, s32, 4096", "sn": "s_and_b32 s32, s32, 0x1ffff",
          "oc": "s_cmp_eq_u32 s33, 2" if i == 3 else None,
          "os": "s_cselect_b32 s10, 0, s10" if i == 3 else None,
          "lc": "s_sub_u32 s33, s33, 1" if i == 3 else None,
          "lt": "s_cmp_lg_u32 s33, 0" if i == 3 else None,
        }
        for (seq, S, So, Oo, Kn, Qo, Vp0, Vp1) in ((SCHED[0], SA, SB, OB, K[p], QB, V0[q], V1[q]),
                                                   (SCHED[1], SB, SA, OA, K[q], QA, V0[p], V1[p])):
            n = 0
            for t in seq.split():
                if t[0] == "e" and t[1:].isdigit(): ex(S, n, n + int(t[1:])); n += int(t[1:])
                elif t == "S1": smf(Oo, Vp1, So + 8)
                elif t == "S0p": smf(Oo, Vp0, So)
                elif t == "M": e(f"v_mfma_f32_32x32x16_bf16 {vr(So,16)}, {vr(Kn,4)}, {vr(Qo,4)}, 0")
                elif T[t] is not None: e(T[t])
            assert n == 16
    e("s_cbranch_scc1 L_loop")
    e("s_setprio 0")
    smf(OB, V0[1], SB)
    smf(OB, V1[1], SB + 8)
    stamp(e, 7)
    e.c("merge the two key halves: half 0 finalises tile A, half 1 tile B")
    e(f"""
    s_xor_b32 s30, s20, 4
    s_mul_i32 s30, s30, {SLOT}
    s_add_u32 s30, s30, {L_R}
    v_add_u32 v2, s30, v112
    v_lshlrev_b32 v4, 2, v1
    v_add_u32 v3, s30, v4
    v_add_u32 v4, s28, v4
    s_lshl_b32 s34, s22, 16
    s_lshl_b32 s35, s26, 10
    s_add_u32 s35, s35, s34
    s_lshl_b32 s31, s25, 15
    s_add_u32 s35, s35, s31
    s_add_u32 s35, s35, {WS_OF:#x}
    s_waitcnt vmcnt(0)
    s_cmp_eq_u32 s25, 0
    s_cbranch_scc1 L_h0
    ds_write_b128 v10, {vr(OA,4)}
    ds_write_b128 v10, {vr(OA+4,4)} offset:1024
    ds_write_b32 v4, v{OA+8} offset:{SSTR}
    """)
    for j in range(9): e(f"v_mov_b32 v{OA+j}, v{OB+j}")
    for j in range(4): e(f"v_mov_b32 v{QA+j}, v{QB+j}")
    e("s_branch L_hx")
    e.label("L_h0")
    e(f"""
    ds_write_b128 v10, {vr(OB,4)}
    ds_write_b128 v10, {vr(OB+4,4)} offset:1024
    ds_write_b32 v4, v{OB+8} offset:{SSTR}
    """)
    e.label("L_hx")
    e(f"""
    s_waitcnt lgkmcnt(0)
    s_barrier
    ds_read_b32 v{SA+8}, v3 offset:{SSTR}
    ds_read_b128 {vr(SA,4)}, v2
    ds_read_b128 {vr(SA+4,4)}, v2 offset:1024
    s_waitcnt lgkmcnt(2)
    v_add_f32 v{OA+8}, v{OA+8}, v{SA+8}
    s_waitcnt lgkmcnt(0)
    """)
    for j in range(8): e(f"v_add_f32 v{OA+j}, v{OA+j}, v{SA+j}")
    e.c("softmax guard: the fast path used a zero shift; it is exact only while the row sum is well inside the")
    e.c("fp32/bf16 range and nothing overflowed.  Otherwise redo this tile with the true row maximum.")
    e(f"""
    v_mul_f32 v2, 0, v{OA}
    """)
    for j in range(1, 8): e(f"v_fmac_f32 v2, 0, v{OA+j}")
    e(f"""
    v_add_f32 v2, v2, v{OA+8}
    v_cmp_nle_f32 vcc, 0x33800000, v2
    v_mov_b32 v3, 0x57800000
    v_cmp_nle_f32 s[30:31], v2, v3
    s_or_b64 vcc, vcc, s[30:31]
    s_cbranch_vccnz L_fallback
    """)
    e.label("L_fin")
    e(f"v_rcp_f32 v2, v{OA+8}")
    e("s_nop 0")
    for j in range(8): e(f"v_mul_f32 v{OA+j}, v2, v{OA+j}")
    for j in range(4): e(f"v_cvt_pk_bf16_f32 v{4+j}, v{OA+2*j}, v{OA+2*j+1}")
    e("buffer_store_dwordx4 v[4:7], v15, s[12:15], s35 offen sc1")
    e.c("phase 3: out tile rows tb3*64.., cols ct3*64..")
    e(f"""
    s_and_b32 s24, s20, 1
    s_bfe_u32 s25, s20, 0x10001
    s_lshl_b32 s34, s68, 16
    v_and_b32 v2, 31, v1
    v_lshrrev_b32 v3, 5, v1
    s_lshl_b32 s27, s24, 5
    v_add_u32 v12, s27, v2
    v_lshlrev_b32 v13, 10, v12
    v_lshl_add_u32 v13, v3, 5, v13
    s_lshl_b32 s28, s25, 6
    s_lshl_b32 s29, s69, 7
    s_add_u32 s28, s28, s29
    s_add_u32 s28, s28, s34
    s_lshl_b32 s31, s20, 12
    s_add_u32 s31, s31, s34
    s_add_u32 s31, s31, {WS_OF:#x}
    s_add_u32 s32, s31, {32768 - 1024}
    s_lshl_b32 s33, s20, 13
    s_add_u32 s33, s33, {L_W}
    v_bfe_u32 v4, v1, 4, 1
    v_bfe_u32 v5, v1, 2, 2
    v_and_b32 v6, 1, v1
    v_bfe_u32 v7, v1, 1, 1
    v_bfe_u32 v8, v1, 3, 1
    v_xor_b32 v8, s25, v8
    v_lshlrev_b32 v9, 6, v8
    v_lshl_add_u32 v9, v6, 5, v9
    v_lshl_add_u32 v9, v4, 4, v9
    v_lshl_add_u32 v9, v7, 3, v9
    v_lshl_add_u32 v9, v5, 7, v9
    v_lshl_add_u32 v25, v3, 9, v9
    s_lshl_b32 s29, s24, 10
    s_add_u32 s29, s29, {L_W}
    v_add_u32 v26, s29, v15
    s_waitcnt vmcnt(0)
    s_barrier
    s_barrier
    """)
    stamp(e, 8)
    for j in range(4):
        e(f"""
        s_add_u32 m0, s33, {j*2048}
        s_nop 0
        buffer_load_dwordx4 v15, s[12:15], s31 offen sc1 lds
        buffer_load_dwordx4 v15, s[12:15], s32 offen offset:1024 sc1 lds
        """)
        if j < 3: e("s_add_u32 s31, s31, 1024\ns_add_u32 s32, s32, 1024")
    e("""
    s_waitcnt vmcnt(4)
    s_barrier
    s_cmp_lt_u32 s20, 4
    s_cbranch_scc1 L_p3
    s_waitcnt vmcnt(0)
    s_barrier
    """)
    stamp_out(e)
    e("s_endpgm")
    e.label("L_p3")
    e(f"""
    s_lshl_b32 s29, s68, 8
    s_add_u32 s29, s29, {WS_G:#x}
    v_lshlrev_b32 v14, 2, v12
    buffer_load_dword v24, v14, s[12:15], s29 offen sc1
    """)
    for half in range(2):
        hs = [h for h in range(32) if ((h >> 1) & 1) == half]
        if half == 1:
            e("s_waitcnt vmcnt(1)\ns_barrier")
        def rdo(k):
            f = 48 + 8 * (k % 8); h = hs[k]
            e(f"ds_read_b64_tr_b16 {vr(f,2)}, v25 offset:{h*2048}")
            e(f"ds_read_b64_tr_b16 {vr(f+2,2)}, v25 offset:{h*2048+1024}")
            e(f"ds_read_b128 {vr(f+4,4)}, v26 offset:{h*2048}")
        for k in range(4): rdo(k)
        for k in range(16):
            f = 48 + 8 * (k % 8)
            e(f"s_waitcnt lgkmcnt({3*min(3, 15-k)})")
            e(f"v_mfma_f32_32x32x16_bf16 v[32:47], {vr(f,4)}, {vr(f+4,4)}, {'0' if (half==0 and k==0) else 'v[32:47]'}")
            if k + 4 < 16: rdo(k + 4)
    e.c("out = b + g*(a-b),  b = x (+ sigmoid(r)*y on the routed row)")
    e(f"""
    v_mov_b32 v4, {L_MS}
    ds_read_b32 v5, v4
    s_lshl_b32 s29, s25, 7
    v_lshl_add_u32 v4, v3, 6, v4
    v_add_u32 v4, s29, v4
    """)
    srd(e, 16, P_OUT, 0x200000)
    e("s_waitcnt vmcnt(0)")
    for j in range(8):
        e(f"v_lshlrev_b32 v{48+2*j}, 16, v{144+j}")
        e(f"v_and_b32 v{49+2*j}, 0xffff0000, v{144+j}")
    e("""
    s_waitcnt lgkmcnt(0)
    v_cmp_eq_u32 vcc, v5, v12
    s_cbranch_vccz L_nomoe
    ds_read_b128 v[64:67], v4 offset:64
    ds_read_b128 v[68:71], v4 offset:80
    ds_read_b128 v[72:75], v4 offset:96
    ds_read_b128 v[76:79], v4 offset:112
    s_and_saveexec_b64 s[30:31], vcc
    s_waitcnt lgkmcnt(0)
    """)
    for j in range(16): e(f"v_add_f32 v{48+j}, v{48+j}, v{64+j}")
    e("s_mov_b64 exec, s[30:31]")
    e.label("L_nomoe")
    for j in range(16): e(f"v_sub_f32 v{32+j}, v{32+j}, v{48+j}")
    for j in range(16): e(f"v_fmac_f32 v{48+j}, v24, v{32+j}")
    for j in range(8): e(f"v_cvt_pk_bf16_f32 v{16+j}, v{48+2*j}, v{49+2*j}")
    of = OPT.get("outf", "")
    e(f"buffer_store_dwordx4 v[16:19], v13, s[16:19], s28 offen {of}")
    e(f"buffer_store_dwordx4 v[20:23], v13, s[16:19], s28 offen offset:16 {of}")
    stamp_out(e)
    e("s_endpgm")

    M = OB
    e.label("L_fallback")
    e(f"""
    s_mov_b32 s10, 0x20000
    s_mov_b32 s30, 0
    v_mov_b32 v2, 0xff800000
    """)
    e.label("L_fb1")
    e(f"""
    buffer_load_dwordx4 {vr(K[0],4)}, v112, s[8:11], s30 offen sc1
    s_waitcnt vmcnt(0)
    v_mfma_f32_32x32x16_bf16 {vr(SA,16)}, {vr(K[0],4)}, {vr(QA,4)}, 0
    s_add_u32 s30, s30, 2048
    s_nop 11
    """)
    for j in range(8): e(f"v_max3_f32 v2, v2, v{SA+2*j}, v{SA+2*j+1}")
    e("""
    s_cmp_lt_u32 s30, 0x20000
    s_cbranch_scc1 L_fb1
    v_mov_b32 v3, v2
    s_nop 1
    v_permlane32_swap_b32 v2, v3
    s_nop 1
    v_max_f32 v2, v2, v3
    """)
    for j in range(16): e(f"v_sub_f32 v{M+j}, 0, v2")
    for j in range(16): e(f"v_mov_b32 v{OA+j}, 0")
    for j in range(4): e(f"v_mov_b32 v{V0[0]+j}, 0x3f803f80\nv_mov_b32 v{V1[0]+j}, 0x3f803f80")
    e("s_mov_b32 s30, 0")
    e.label("L_fb2")
    e(f"""
    buffer_load_dwordx4 {vr(K[0],4)}, v112, s[8:11], s30 offen sc1
    s_mov_b32 exec_lo, 0xffff
    s_mov_b32 exec_hi, 0xffff
    buffer_load_dwordx4 {vr(V0[0],4)}, v14, s[8:11], s30 offen offset:1024 sc1
    buffer_load_dwordx4 {vr(V1[0],4)}, v14, s[8:11], s30 offen offset:1536 sc1
    s_mov_b64 exec, -1
    s_waitcnt vmcnt(0)
    v_mfma_f32_32x32x16_bf16 {vr(SA,16)}, {vr(K[0],4)}, {vr(QA,4)}, {vr(M,16)}
    s_add_u32 s30, s30, 2048
    s_nop 11
    """)
    ex(SA, 0, 16)
    e("s_nop 1")
    smf(OA, V0[0], SA)
    smf(OA, V1[0], SA + 8)
    e("""
    s_cmp_lt_u32 s30, 0x20000
    s_cbranch_scc1 L_fb2
    s_nop 15
    s_branch L_fin
    """)

def helper(e):
    e.label("L_help")
    common_srd(e)
    srd(e, 8, P_WR, 1024)
    srd(e, 16, P_GW, 1024)
    e("""
    s_lshl_b32 s24, s22, 3
    s_add_u32 s24, s24, s21
    s_lshl_b32 s25, s24, 13
    s_add_u32 s26, s25, 4096
    buffer_load_dwordx4 v[16:19], v15, s[8:11], 0 offen
    buffer_load_dwordx4 v[20:23], v15, s[16:19], 0 offen
    """)
    for r in range(8):
        e(f"buffer_load_dwordx4 {vr(24+4*r,4)}, v15, s[4:7], s{25 + r//4} offen offset:{(r%4)*1024}")
    epoch_load(e)
    e("s_setprio 3")
    epoch_tag(e)
    e.c("group leaders initialise the sync words {mask = 0, tag}")
    e(f"""
    v_mov_b32 v56, 0
    v_mov_b32 v57, s60
    s_lshl_b32 s34, s21, 7
    s_add_u32 s34, s34, {WS_C1:#x}
    s_lshl_b32 s35, s22, 7
    s_add_u32 s35, s35, {WS_C2:#x}
    s_mov_b64 exec, 1
    s_cmp_lg_u32 s22, 0
    s_cbranch_scc1 L_nl1
    buffer_store_dwordx2 v[56:57], v56, s[12:15], s34 offen sc1
    """)
    e.label("L_nl1")
    e("""
    s_cmp_lg_u32 s21, 0
    s_cbranch_scc1 L_nl2
    buffer_store_dwordx2 v[56:57], v56, s[12:15], s35 offen sc1
    """)
    e.label("L_nl2")
    e("s_mov_b64 exec, -1")
    e("v_mov_b32 v4, 0\nv_mov_b32 v5, 0")
    for r in range(8):
        if r % 2 == 0: e("s_barrier")
        if r == 0: e("s_waitcnt vmcnt(0)")
        e("v_mov_b32 v2, 0\nv_mov_b32 v3, 0")
        for j in range(4):
            e(f"v_dot2c_f32_bf16 v2, v{24+4*r+j}, v{16+j}")
            e(f"v_dot2c_f32_bf16 v3, v{24+4*r+j}, v{20+j}")
        e("s_nop 2")
        for m in DPP6:
            e(f"v_add_f32_dpp v2, v2, v2 {m} bank_mask:0xf")
            e(f"v_add_f32_dpp v3, v3, v3 {m} bank_mask:0xf")
            e("s_nop 0")
        e(f"v_readlane_b32 s27, v2, 63\nv_readlane_b32 s28, v3, 63\ns_nop 2\nv_writelane_b32 v4, s27, {r}\nv_writelane_b32 v5, s28, {r}")
    e("s_barrier")
    e(f"""
    s_mov_b64 exec, 0xff
    v_mul_f32 v5, {NLOG2E:#x}, v5
    v_exp_f32 v5, v5
    v_mov_b32 v2, v4
    v_add_f32 v5, 1.0, v5
    v_rcp_f32 v5, v5
    v_max_f32_dpp v2, v2, v2 row_shr:1 row_mask:0xf bank_mask:0xf
    s_nop 1
    v_max_f32_dpp v2, v2, v2 row_shr:2 row_mask:0xf bank_mask:0xf
    s_nop 1
    v_max_f32_dpp v2, v2, v2 row_shr:4 row_mask:0xf bank_mask:0xf
    v_lshlrev_b32 v6, 2, v1
    s_lshl_b32 s25, s24, 5
    s_add_u32 s25, s25, {WS_G:#x}
    v_readlane_b32 s27, v2, 7
    buffer_store_dword v5, v6, s[12:15], s25 offen sc1
    s_nop 0
    v_cmp_eq_f32 vcc, s27, v4
    s_ff1_i32_b64 s28, vcc
    s_max_i32 s28, s28, 0
    s_lshl_b32 s29, s24, 3
    s_add_u32 s28, s28, s29
    v_mov_b32 v2, s27
    v_mov_b32 v3, s28
    s_add_u32 s29, s29, {WS_RP:#x}
    s_mov_b64 exec, 1
    buffer_store_dwordx2 v[2:3], v6, s[12:15], s29 offen sc1
    s_mov_b64 exec, -1
    s_cmp_lg_u32 s2, 0
    s_cbranch_scc1 L_noz
    v_mov_b32 v8, 0
    v_mov_b32 v9, 0
    v_mov_b32 v10, 0
    v_mov_b32 v11, 0
    s_mov_b32 s29, {WS_Y:#x}
    buffer_store_dwordx4 v[8:11], v15, s[12:15], s29 offen sc1
    buffer_store_dwordx4 v[8:11], v15, s[12:15], s29 offen offset:1024 sc1
    """)
    e.label("L_noz")
    e.c("the sync words this workgroup will OR into must carry this launch's tag")
    e(f"""
    s_barrier
    s_barrier
    s_sub_u32 s25, s35, s34
    v_mul_u32_u24 v7, s25, v1
    s_mov_b64 exec, 3
    buffer_load_dword v12, v7, s[12:15], s34 offen offset:4 sc1
    s_barrier
    s_barrier
    s_waitcnt vmcnt(0)
    v_cmp_ne_u32 vcc, s60, v12
    s_cbranch_vccz L_pv_x
    """)
    poll(e, "pv", "buffer_load_dword v12, v7, s[12:15], s34 offen offset:4 sc1", "v_cmp_ne_u32 vcc, s60, v12")
    e(f"""
    s_mov_b64 exec, -1
    s_lshl_b32 s25, 1, s22
    v_mov_b32 v8, s25
    v_mov_b32 v58, -1
    v_mov_b32 v59, s60
    s_mov_b64 exec, 1
    """)
    stamp(e, 8)
    e("""
    s_barrier
    buffer_atomic_or v8, v56, s[12:15], s34 offen
    """)
    stamp(e, 5)
    e("s_barrier")
    if OPT.get("p1d"): e(f"s_sleep {OPT['p1d']}")
    poll(e, "p1", "buffer_load_dwordx2 v[60:61], v56, s[12:15], s34 offen sc1", "v_cmp_ne_u64 vcc, v[58:59], v[60:61]", narrow=False, sleep=int(OPT.get("p1s", 0)))
    e("s_mov_b64 exec, -1\ns_barrier")
    stamp(e, 6)
    GU = 0; UP = GU + 16384 + 128; DN = UP + 16384; XS = DN + 16 * 1088; HSX = XS + 1024
    e(f"""
    s_cmp_ge_u32 s2, {NMOE}
    s_cbranch_scc1 L_nomoew
    v_lshrrev_b32 v2, 1, v1
    v_mul_u32_u24 v2, 2752, v2
    v_and_b32 v3, 1, v1
    v_lshl_add_u32 v10, v3, 4, v2
    """)
    srd(e, 8, P_WG, 512 * 2752)
    srd(e, 16, P_WU, 512 * 2752)
    srd(e, 64, P_WD, 1376 * 1024)
    e(f"s_sleep {int(OPT.get('moed', 16))}")
    e("s_lshl_b32 s27, s2, 5\ns_lshl_b32 s28, s2, 14\ns_mov_b32 s29, 0")
    def mbatch(k):
        e.label(f"L_mload{k}")
        e(f"""
        s_lshl_b32 s30, s29, 10
        s_add_u32 m0, s30, {GU}
        s_mul_i32 s31, s29, 1088
        buffer_load_dwordx4 v10, s[8:11], s27 offen lds
        s_add_u32 m0, s30, {UP}
        s_add_u32 s29, s29, 1
        buffer_load_dwordx4 v10, s[16:19], s27 offen lds
        s_add_u32 m0, s31, {DN}
        s_add_u32 s27, s27, {32*2752}
        buffer_load_dwordx4 v15, s[64:67], s28 offen lds
        s_add_u32 s28, s28, 1024
        s_cmp_lt_u32 s29, {4*k+4}
        s_cbranch_scc1 L_mload{k}
        """)
    mbatch(0)
    e(f"s_mov_b32 s25, {WS_C1:#x}\nv_lshlrev_b32 v7, 7, v1\ns_mov_b64 exec, 0xff")
    poll(e, "pa", "buffer_load_dwordx2 v[60:61], v7, s[12:15], s25 offen sc1", "v_cmp_ne_u64 vcc, v[58:59], v[60:61]")
    e("s_mov_b64 exec, -1")
    mbatch(1)
    e(f"""
    s_mov_b32 s25, {WS_RP:#x}
    v_lshlrev_b32 v2, 5, v1
    buffer_load_dwordx4 v[16:19], v2, s[12:15], s25 offen sc1
    buffer_load_dwordx4 v[20:23], v2, s[12:15], s25 offen offset:16 sc1
    s_waitcnt vmcnt(0)
    v_max_f32 v2, v16, v18
    v_max3_f32 v2, v2, v20, v22
    s_nop 1
    """)
    for m in DPP6: e(f"v_max_f32_dpp v2, v2, v2 {m} bank_mask:0xf\ns_nop 1")
    e("""
    v_readlane_b32 s30, v2, 63
    v_mov_b32 v3, 0x7fff
    s_nop 0
    """)
    for k in (22, 20, 18, 16):
        e(f"v_cmp_eq_f32 vcc, s30, v{k}\ns_nop 1\nv_cndmask_b32 v3, v3, v{k+1}, vcc")
    e("s_nop 1")
    for m in DPP6: e(f"v_min_u32_dpp v3, v3, v3 {m} bank_mask:0xf\ns_nop 1")
    e(f"""
    v_readlane_b32 s31, v3, 63
    s_nop 3
    s_min_u32 s33, s31, 2047
    s_mov_b32 s62, s30
    s_lshl_b32 s32, s33, 10
    s_mov_b32 m0, {XS}
    s_nop 4
    buffer_load_dwordx4 v15, s[4:7], s32 offen lds
    """)
    mbatch(2)
    e("s_waitcnt vmcnt(0)")
    stamp(e, 1)
    mbatch(3)
    e(f"""
    v_bfe_u32 v4, v1, 4, 1
    v_lshrrev_b32 v5, 5, v1
    v_and_b32 v6, 15, v1
    v_mul_u32_u24 v2, {UP-GU}, v4
    v_lshl_add_u32 v2, v5, 8, v2
    v_lshl_add_u32 v11, v6, 3, v2
    v_lshlrev_b32 v12, 4, v5
    v_add_u32 v12, {XS}, v12
    v_bfe_u32 v2, v1, 2, 2
    v_lshl_add_u32 v2, v5, 3, v2
    v_mul_u32_u24 v2, 1088, v2
    v_lshl_add_u32 v2, v4, 5, v2
    v_and_b32 v3, 3, v1
    v_lshl_add_u32 v2, v3, 3, v2
    v_add_u32 v13, {DN}, v2
    s_waitcnt vmcnt(0)
    """)
    stamp(e, 2)
    for g in range(8):
        for k in range(4):
            ks = 4 * g + k; f = 64 + 8 * k
            e(f"ds_read_b128 {vr(f,4)}, v12 offset:{ks*32}")
            e(f"ds_read_b64_tr_b16 {vr(f+4,2)}, v11 offset:{ks*512}")
            e(f"ds_read_b64_tr_b16 {vr(f+6,2)}, v11 offset:{ks*512+128}")
        for k in range(4):
            f = 64 + 8 * k
            e(f"s_waitcnt lgkmcnt({9-3*k})")
            e(f"v_mfma_f32_32x32x16_bf16 v[48:63], {vr(f,4)}, {vr(f+4,4)}, {'0' if (g==0 and k==0) else 'v[48:63]'}")
    e(f"""
    s_nop 15
    v_permlane16_swap_b32 v48, v49
    s_nop 1
    v_mul_f32 v2, {NLOG2E:#x}, v48
    v_exp_f32 v2, v2
    s_nop 0
    v_add_f32 v2, 1.0, v2
    v_rcp_f32 v2, v2
    s_nop 0
    v_mul_f32 v2, v2, v48
    v_mul_f32 v2, v2, v49
    v_cvt_pk_bf16_f32 v2, v2, v2
    v_lshlrev_b32 v3, 1, v6
    v_add_u32 v3, {HSX}, v3
    ds_write_b16 v3, v2
    v_add_u32 v12, {HSX-XS}, v12
    s_waitcnt lgkmcnt(0)
    ds_read_b128 v[16:19], v12
    v_and_b32 v3, 31, v1
    v_lshlrev_b32 v3, 2, v3
    s_mov_b32 s25, {WS_Y:#x}
    """)
    for g in range(4):
        for k in range(4):
            t = 4 * g + k
            e(f"ds_read_b64_tr_b16 {vr(20+4*k,2)}, v13 offset:{t*64}")
            e(f"ds_read_b64_tr_b16 {vr(22+4*k,2)}, v13 offset:{t*64+4*1088}")
        for k in range(4):
            e(f"s_waitcnt lgkmcnt({6-2*k})")
            e(f"v_mfma_f32_32x32x16_bf16 {vr(64+16*k,16)}, v[16:19], {vr(20+4*k,4)}, 0")
        e("s_nop 10\ns_mov_b64 exec, 0xffffffff")
        for k in range(4):
            e(f"buffer_atomic_add_f32 v{64+16*k}, v3, s[12:15], s25 offen offset:{(4*g+k)*128}")
        e("s_mov_b64 exec, -1")
    srd(e, 16, P_DBG, 256)
    e(f"""
    v_mov_b32 v2, s33
    v_mov_b32 v3, s62
    v_mov_b32 v4, 0
    v_mov_b32 v5, 1
    s_mov_b64 exec, 1
    s_cmp_lg_u32 s2, 0
    s_cbranch_scc1 L_noix
    buffer_store_dwordx2 v[2:3], v4, s[16:19], 0 offen offset:8 sc1
    """)
    e.label("L_noix")
    e("""
    s_waitcnt vmcnt(0)
    buffer_atomic_add v5, v4, s[16:19], 0 offen
    s_mov_b64 exec, -1
    """)
    stamp(e, 3)
    e.label("L_nomoew")
    srd(e, 8, P_WO, 0x80000)
    srd(e, 16, P_DBG, 256)
    e(f"""
    v_lshrrev_b32 v2, 3, v1
    v_and_b32 v3, 7, v1
    v_bfe_u32 v4, v1, 4, 1
    v_lshlrev_b32 v4, 2, v4
    v_xor_b32 v3, v3, v4
    v_lshlrev_b32 v3, 4, v3
    v_lshl_add_u32 v10, v2, 10, v3
    s_lshl_b32 s27, s69, 7
    s_mov_b32 s29, 0
    s_sleep {int(OPT.get('wod', 16))}
    """)
    e.label("L_wload")
    for i in range(int(OPT.get("wob", 16))):
        e("""
        s_mov_b32 m0, s29
        s_add_u32 s29, s29, 1024
        buffer_load_dwordx4 v10, s[8:11], s27 offen lds
        s_add_u32 s27, s27, 8192
        """)
    e("""
    s_waitcnt vmcnt(0)
    s_cmp_lt_u32 s29, 65536
    s_cbranch_scc1 L_wload
    """)
    stamp(e, 4)
    e(f"""
    s_lshl_b32 s25, 1, s21
    v_mov_b32 v8, s25
    v_mov_b32 v58, 0xff
    v_mov_b32 v59, s60
    v_mov_b32 v56, 0
    s_lshl_b32 s26, s68, 7
    s_add_u32 s26, s26, {WS_C2:#x}
    s_mov_b64 exec, 1
    """)
    stamp(e, 7)
    e("""
    s_barrier
    buffer_load_dwordx4 v[16:19], v56, s[16:19], 0 offen sc1
    s_barrier
    buffer_atomic_or v8, v56, s[12:15], s35 offen
    """)
    if OPT.get("p2d"): e(f"s_sleep {OPT['p2d']}")
    poll(e, "p2", "buffer_load_dwordx2 v[60:61], v56, s[12:15], s26 offen sc1", "v_cmp_ne_u64 vcc, v[58:59], v[60:61]", narrow=False, sleep=int(OPT.get("p2s", 0)))
    e(f"""
    s_barrier
    v_cmp_ne_u32 vcc, {NMOE}, v16
    s_cbranch_vccz L_pm_x
    """)
    poll(e, "pm", "buffer_load_dwordx4 v[16:19], v56, s[16:19], 0 offen sc1", f"v_cmp_ne_u32 vcc, {NMOE}, v16", sleep=8, narrow=False)
    e(f"""
    v_readfirstlane_b32 s30, v18
    v_readfirstlane_b32 s31, v19
    s_mov_b64 exec, -1
    s_lshl_b32 s27, s68, 6
    s_sub_u32 s30, s30, s27
    v_mov_b32 v2, s30
    v_mov_b32 v3, {L_MS}
    ds_write_b32 v3, v2
    s_cmp_ge_u32 s30, 64
    s_cbranch_scc1 L_noy
    v_lshlrev_b32 v4, 2, v1
    s_lshl_b32 s27, s69, 8
    s_add_u32 s27, s27, {WS_Y:#x}
    buffer_load_dword v5, v4, s[12:15], s27 offen sc1
    v_mov_b32 v6, s31
    v_mul_f32 v6, {NLOG2E:#x}, v6
    v_exp_f32 v6, v6
    v_add_u32 v4, {L_MS}, v4
    v_add_f32 v6, 1.0, v6
    v_rcp_f32 v6, v6
    s_waitcnt vmcnt(0)
    v_mul_f32 v5, v5, v6
    ds_write_b32 v4, v5 offset:64
    """)
    e.label("L_noy")
    e(f"""
    s_waitcnt lgkmcnt(0)
    s_cmp_lg_u32 s2, 0
    s_cbranch_scc1 L_hend
    s_mov_b32 s27, {WS_EP:#x}
    s_mov_b64 exec, 1
    buffer_store_dword v59, v56, s[12:15], s27 offen
    """)
    e.label("L_hend")
    stamp_out(e)
    e.label("L_end")
    e("s_endpgm")

def main(path):
    e = Asm()
    kn = NAME + "_kernel"
    e(f".globl {kn}\n.p2align 8\n.type {kn},@function")
    e.label(kn)
    entry(e)
    producer(e)
    compute(e)
    attention(e)
    helper(e)
    body = e.text()
    for p in check_text(body): print("HAZARD", p)
    hdr = f"""; gated mix of an MHA block and a top-1 routed FFN branch, gfx950: one persistent launch.
; @launch grid=(256,1,1) block=(576,1,1) lds={LDS_TOTAL}
.amdgcn_target "amdgcn-amd-amdhsa--gfx950"
.text
"""
    tail = f""".section .rodata,"a"
.p2align 6
.amdhsa_kernel {kn}
  .amdhsa_next_free_vgpr 160
  .amdhsa_next_free_sgpr 100
  .amdhsa_accum_offset 160
  .amdhsa_group_segment_fixed_size 0
  .amdhsa_kernarg_size 96
  .amdhsa_user_sgpr_count 2
  .amdhsa_user_sgpr_kernarg_segment_ptr 1
  .amdhsa_system_sgpr_workgroup_id_x 1
.end_amdhsa_kernel
"""
    open(path, "w").write(hdr + body + tail)

if __name__ == "__main__":
    for o in sys.argv[2:]:
        if "=" in o: OPT[o.split("=")[0]] = o.split("=")[1]
        else: OPT[o] = True
    INSTR = bool(OPT.get("instr"))
    main(sys.argv[1])
```

```python
import sys
from asmlib import *

NAME = "gated_mix__mha_block__moe_arch_mod__prompt"
OPT = {}
HS     = 0x20000
WS_KV  = 0x000000
WS_OF  = 0x600000
WS_G   = 0x802000
WS_P1  = 0x830000
WS_YP  = 0x850000
WS_RP  = 0x806000
WS_EP  = 0x808000
CS = 4352
WS_C1  = 0x8C0000
WS_C2  = WS_C1 + 8 * CS
WS_C3  = WS_C2 + 32 * CS
WS_C4  = WS_C3 + 24 * CS
WS_DBG = 0x880000
WS_SIZE = 0x920000
QSCALE = 0x3EB8AA3B
NLOG2E = 0xBFB8AA3B
NMOE = 176
L_X = 0; L_W = 65536
SLOT = 2080; SSTR = 8 * SLOT
L_R = 131072 - 3 * SSTR
def ringoff(s): return ((s + 3) % 4) * SSTR
L_QX = 149504
L_MS = L_QX + 8192
L_M = 65536
L_RM = L_MS + 384
L_H = L_MS + 512
LDS_TOTAL = 163840
POLL_MAX = 1 << 17

INSTR = False
def stamp(e, i):
    if INSTR: e(f"{'s_memrealtime' if OPT.get('rt') else 's_memtime'} s[{70+2*i}:{71+2*i}]")
def tstamp(e, i):
    if OPT.get("tail"): stamp(e, i)
def stamp_init(e):
    if INSTR:
        e("s_memrealtime s[90:91]")
        for i in range(10): e(f"s_mov_b64 s[{70+2*i}:{71+2*i}], 0")
        stamp(e, 0)
def stamp_out(e):
    if not INSTR: return
    e("s_waitcnt vmcnt(0)")
    stamp(e, 9)
    e("s_memrealtime s[92:93]")
    e("s_waitcnt lgkmcnt(0)")
    e("s_mov_b64 exec, 1")
    e("s_lshl_b32 s96, s2, 4\ns_add_u32 s96, s96, s20\ns_lshl_b32 s96, s96, 6")
    e(f"s_add_u32 s96, s96, {WS_DBG:#x}")
    for i in range(10): e(f"v_mov_b32 v{4+i}, s{70+2*i}")
    e("v_mov_b32 v14, s90\nv_mov_b32 v15, s92\nv_mov_b32 v2, 0")
    for i in range(3): e(f"buffer_store_dwordx4 v[{4+4*i}:{7+4*i}], v2, s[12:15], s96 offen offset:{16*i}")

def isize(l):
    p = parse(l)
    if p is None: return 0
    if p["op"] in ("v_exp_f32", "s_waitcnt", "s_barrier", "s_nop", "s_setprio", "v_dot2c_f32_bf16") or p["op"].startswith(("s_cbranch", "s_branch")): return 4
    return 8
def touch_chain(e, name, nseg, step=None):
    step = step or int(OPT.get("tstep", 128))
    L = e.lines
    a = L.index(f";@{name}["); b = L.index(f";@{name}]")
    pts = [a + 1]; acc = 0
    for i in range(a + 1, b):
        acc += isize(L[i])
        prev = L[i].strip()
        if acc >= step - 4 and not prev.startswith(("s_cmp", "s_branch", "s_endpgm")) and isize(L[i]):
            pts.append(i + 1); acc = 0
    n = len(pts); firsts = [(k * n) // nseg for k in range(nseg)]
    out = L[:a + 1]; k = 0
    for i in range(a + 1, b + 1):
        if k < n and pts[k] == i:
            tgt = f"L_{name}_ret" if (k + 1 == n or k + 1 in firsts) else f"L_{name}_{k+1}"
            if k in firsts: out.append(f"L_{name}_s{firsts.index(k)}:")
            out.append(f"L_{name}_{k}:"); out.append(f"    s_cbranch_vccnz {tgt}"); k += 1
        out.append(L[i])
    e.lines = out + L[b + 1:]

def srd(e, d, base, size):
    e(f"s_mov_b32 s{d}, s{base}\ns_mov_b32 s{d+1}, s{base+1}\ns_mov_b32 s{d+2}, {size:#x}\ns_mov_b32 s{d+3}, 0x20000")

DPP6 = ("row_shr:1 row_mask:0xf", "row_shr:2 row_mask:0xf", "row_shr:4 row_mask:0xf", "row_shr:8 row_mask:0xf",
        "row_bcast:15 row_mask:0xa", "row_bcast:31 row_mask:0xc")
P_X, P_WQKV, P_WO, P_WR, P_WG, P_WU, P_WD, P_GW, P_OUT, P_DBG, P_WS = 36, 38, 40, 44, 46, 48, 50, 52, 54, 56, 58

def poll(e, name, load, cmp_, sleep=0, narrow=True):
    e("s_mov_b32 s61, 0")
    e.label(f"L_{name}")
    e(load)
    e(f"s_add_u32 s61, s61, 1\ns_cmp_gt_u32 s61, {POLL_MAX}\ns_cbranch_scc1 L_{name}_x")
    e("s_waitcnt vmcnt(0)")
    e(cmp_)
    e(f"s_cbranch_vccz L_{name}_x")
    if narrow: e("s_mov_b64 exec, vcc")
    if sleep: e(f"s_sleep {sleep}")
    e(f"s_branch L_{name}")
    e.label(f"L_{name}_x")
    e("s_waitcnt vmcnt(0)")

def entry(e):
    e("""
    s_cmp_ge_u32 s2, 256
    s_cbranch_scc1 L_end
    """)
    stamp_init(e)
    e("""
    s_load_dwordx16 s[36:51], s[0:1], 0
    s_load_dwordx8 s[52:59], s[0:1], 64
    """)
    if not OPT.get("nopf"):
        e.c("pull the whole kernel text towards the L2 while the kernel arguments are in flight (one dword per 32 B of code)")
        e("s_getpc_b64 s[62:63]")
        e.label("L_text0")
        e("""
        v_lshlrev_b32 v3, 5, v0
        v_min_u32 v3, L_end-L_text0, v3
        global_load_dword v159, v3, s[62:63]
        """)
    e("""
    v_lshrrev_b32 v2, 6, v0
    v_and_b32 v1, 63, v0
    v_readfirstlane_b32 s20, v2
    s_and_b32 s28, s2, 7
    s_lshr_b32 s29, s2, 3
    s_and_b32 s21, s28, 1
    s_lshl_b32 s21, s21, 2
    s_and_b32 s30, s29, 3
    s_add_u32 s21, s21, s30
    s_lshr_b32 s22, s28, 1
    s_lshl_b32 s22, s22, 3
    s_lshr_b32 s31, s29, 2
    s_add_u32 s22, s22, s31
    s_lshl_b32 s23, s30, 1
    s_add_u32 s23, s23, s31
    s_lshl_b32 s68, s28, 2
    s_add_u32 s68, s68, s30
    s_mov_b32 s69, s31
    v_lshlrev_b32 v15, 4, v1
    """)

def common_srd(e):
    e("s_waitcnt lgkmcnt(0)")
    srd(e, 4, P_X, 0x200000)
    srd(e, 12, P_WS, WS_SIZE)
def epoch_load(e):
    e(f"s_add_u32 s62, s{P_WS}, {WS_EP:#x}\ns_addc_u32 s63, s{P_WS+1}, 0\ns_load_dword s60, s[62:63], 0")
def epoch_tag(e):
    e("s_waitcnt lgkmcnt(0)\ns_mul_i32 s60, s60, 0x9E3779B1\ns_add_u32 s60, s60, 0x7F4A7C15")

def producer(e):
    e(f"""
    v_lshrrev_b32 v2, 3, v1
    v_and_b32 v3, 7, v1
    v_lshrrev_b32 v4, 4, v1
    v_xor_b32 v5, v3, v4
    v_lshlrev_b32 v5, 4, v5
    v_lshl_add_u32 v10, v2, 10, v5
    v_xor_b32 v11, 64, v10
    v_add_u32 v11, 7168, v11
    v_and_b32 v4, 1, v4
    v_mul_u32_u24 v6, 3072, v2
    v_lshlrev_b32 v7, 2, v4
    v_xor_b32 v7, v3, v7
    v_lshl_add_u32 v12, v7, 4, v6
    s_lshl_b32 s25, s22, 16
    s_lshl_b32 s26, s20, 14
    s_add_u32 s25, s25, s26
    s_mul_i32 s26, s20, 49152
    s_lshl_b32 s27, s21, 7
    s_add_u32 s26, s26, s27
    s_lshl_b32 s27, s20, 11
    s_lshl_b32 s28, s20, 12
    s_mov_b32 s24, 0
    s_mov_b32 s6, 0x200000
    s_mov_b32 s7, 0x20000
    s_mov_b32 s18, 0x180000
    s_mov_b32 s19, 0x20000
    s_waitcnt lgkmcnt(0)
    s_mov_b64 s[4:5], s[{P_X}:{P_X+1}]
    s_mov_b64 s[16:17], s[{P_WQKV}:{P_WQKV+1}]
    {"s_mov_b64 s[98:99], s[38:39]" if OPT.get("spf") else ""}
    s_cmp_ge_u32 s20, 4
    s_cbranch_scc1 L_notprod
    """)
    e.c("chunk s24: x -> X tile, Wk|Wv -> ring slot s24 & 3")
    e.label("L_pi")
    e(f"""
    s_add_u32 s30, s23, s24
    s_and_b32 s30, s30, 7
    s_lshl_b32 s31, s30, 7
    s_add_u32 s31, s31, s25
    s_mul_i32 s32, s30, 196608
    s_mov_b32 m0, s27
    s_add_u32 s32, s32, s26
    buffer_load_dwordx4 v10, s[4:7], s31 offen lds
    buffer_load_dwordx4 v11, s[4:7], s31 offen offset:1024 lds
    s_add_u32 s33, s32, {1024 + 24576 - 2048}
    s_add_u32 m0, s28, {L_W}
    s_add_u32 s32, s32, 1024
    buffer_load_dwordx4 v12, s[16:19], s32 offen lds
    buffer_load_dwordx4 v12, s[16:19], s32 offen offset:1024 lds
    buffer_load_dwordx4 v12, s[16:19], s33 offen offset:2048 lds
    buffer_load_dwordx4 v12, s[16:19], s33 offen offset:3072 lds
    s_add_u32 s27, s27, 8192
    s_add_u32 s28, s28, 16384
    s_and_b32 s28, s28, 0xffff
    s_add_u32 s24, s24, 1
    s_cmp_eq_u32 s24, 2
    s_cbranch_scc1 L_setup
    s_and_b32 s30, s24, 5
    s_cmp_eq_u32 s30, 1
    s_cbranch_scc1 L_pi
    s_waitcnt vmcnt(12)
    """)
    e.label("L_pb")
    e("s_barrier")
    if OPT.get("spf"):
        NH = int(OPT["spf"])
        e("s_cmp_gt_u32 s24, 6\ns_cbranch_scc1 L_nspf")
        for r in range(4):
            for h in range(NH): e(f"s_load_dword s{100 + (r & 1)}, s[98:99], {r*3072 + h*64}")
        e("s_add_u32 s98, s98, 12288\ns_addc_u32 s99, s99, 0")
        e.label("L_nspf")
    e("""
    s_cmp_lt_u32 s24, 8
    s_cbranch_scc1 L_pi
    """)
    e.c("Wq chunk s24 - 8 (s27 has walked to the W ring)")
    e.label("L_pq")
    e(f"""
    s_add_u32 s30, s23, s24
    s_and_b32 s30, s30, 7
    s_mul_i32 s32, s30, 196608
    s_add_u32 s32, s32, s26
    s_mov_b32 m0, s27
    s_add_u32 s33, s32, {24576 - 1024}
    buffer_load_dwordx4 v12, s[16:19], s32 offen lds
    buffer_load_dwordx4 v12, s[16:19], s33 offen offset:1024 lds
    s_add_u32 s27, s27, 8192
    s_add_u32 s24, s24, 1
    s_cmp_eq_u32 s24, 10
    s_cbranch_scc0 L_pq1
    s_waitcnt vmcnt(10)
    s_barrier
    """)
    e.label("L_pq1")
    e("""
    s_cmp_eq_u32 s24, 12
    s_cbranch_scc0 L_pq2
    s_waitcnt vmcnt(8)
    s_barrier
    """)
    e.label("L_pq2")
    e("""
    s_cmp_eq_u32 s24, 14
    s_cbranch_scc0 L_pq3
    s_waitcnt vmcnt(4)
    """)
    stamp(e, 2)
    e("s_barrier")
    e.label("L_pq3")
    e("""
    s_cmp_lt_u32 s24, 16
    s_cbranch_scc1 L_pq
    s_waitcnt vmcnt(4)
    """)
    stamp(e, 3)
    e("""
    s_barrier
    s_barrier
    s_waitcnt vmcnt(0)
    """)
    stamp(e, 4)
    e("s_barrier")
    stamp(e, 5)
    e(f"""
    buffer_load_dwordx4 {vr(XR,4)}, v{A_OUT}, s[4:7], s64 offen
    buffer_load_dwordx4 {vr(XR+4,4)}, v{A_OUT}, s[4:7], s64 offen offset:16
    s_branch L_b10
    """)
    e.label("L_notprod")
    e("""
    s_cmp_eq_u32 s20, 8
    s_cbranch_scc1 L_help
    """)
    e.label("L_setup")
    srd(e, 12, P_WS, WS_SIZE)
    if OPT.get("spf"):
        e(f"""
        s_and_b32 s30, s23, 7
        s_mul_i32 s30, s30, 196608
        s_and_b32 s31, s20, 3
        s_mul_i32 s31, s31, 49152
        s_add_u32 s30, s30, s31
        s_lshl_b32 s31, s21, 7
        s_add_u32 s30, s30, s31
        s_add_u32 s98, s{P_WQKV}, s30
        s_addc_u32 s99, s{P_WQKV+1}, 0
        """)
    attn_setup(e)
    e(f"""
    v_mov_b32 v2, s48
    v_mov_b32 v4, 0x3f803f80
    v_mov_b32 v5, 0x3f803f80
    v_mov_b32 v6, 0
    v_mov_b32 v7, 0
    ds_write_b64 v2, v[4:5] offset:{ringoff(0) + 2048}
    ds_write_b64 v2, v[4:5] offset:{ringoff(0) + 2056}
    ds_write_b64 v2, v[6:7] offset:{ringoff(0) + 2064}
    ds_write_b64 v2, v[6:7] offset:{ringoff(0) + 2072}
    """)
    e("""
    s_mov_b64 vcc, 0
    s_cmp_ge_u32 s20, 4
    s_cbranch_scc1 L_comp
    s_waitcnt vmcnt(6)
    """)
    stamp(e, 1)
    e("s_branch L_pb")

def compute(e):
    e.label("L_comp")
    AK, AV, AQ, F = 16, 32, 48, 64
    e("""
    s_and_b32 s24, s20, 1
    s_and_b32 s25, s20, 2
    v_and_b32 v2, 31, v1
    v_lshrrev_b32 v3, 5, v1
    v_lshlrev_b32 v4, 7, v2
    s_lshl_b32 s26, s24, 12
    v_add_u32 v4, s26, v4
    v_bfe_u32 v5, v2, 1, 3
    v_xor_b32 v5, v5, v3
    """)
    for ks in range(4):
        e(f"v_xor_b32 v6, {2*ks}, v5\nv_lshl_add_u32 v{8+ks}, v6, 4, v4")
    e(f"""
    v_bfe_u32 v4, v1, 4, 1
    v_bfe_u32 v5, v1, 2, 2
    v_and_b32 v6, 3, v1
    v_bfe_u32 v7, v1, 3, 1
    v_lshlrev_b32 v7, 1, v7
    v_xor_b32 v7, v7, v4
    v_xor_b32 v7, s25, v7
    v_lshlrev_b32 v7, 5, v7
    v_lshl_add_u32 v7, v5, 7, v7
    v_lshl_add_u32 v7, v6, 3, v7
    v_add_u32 v7, {L_W}, v7
    v_lshl_add_u32 v12, v3, 11, v7
    v_lshl_add_u32 v13, v3, 10, v7
    s_lshl_b32 s26, s25, 11
    s_lshl_b32 s27, s24, 10
    s_add_u32 s26, s26, s27
    s_add_u32 s26, s26, {L_QX}
    v_add_u32 v14, s26, v15
    s_lshl_b32 s26, s21, 2
    s_add_u32 s26, s26, s25
    s_mul_i32 s26, s26, {HS}
    s_lshl_b32 s27, s22, 1
    s_add_u32 s27, s27, s24
    s_lshl_b32 s27, s27, 11
    s_add_u32 s26, s26, s27
    s_add_u32 s27, s26, {HS}
    s_lshl_b32 s28, s24, 2
    s_add_u32 s28, s28, s25
    s_mul_i32 s28, s28, {SLOT}
    s_add_u32 s28, s28, {L_R + ringoff(0)}
    v_and_b32 v7, 15, v1
    v_lshlrev_b32 v7, 4, v7
    v_lshl_add_u32 v7, v3, 8, v7
    v_mul_u32_u24 v5, {SLOT}, v4
    v_add3_u32 v5, v5, v7, s28
    v_mul_u32_u24 v2, {HS}, v4
    v_add_u32 v7, v7, v2
    v_add_u32 v2, s28, v15
    s_mov_b32 s30, {QSCALE:#x}
    s_mov_b32 s31, {QSCALE:#x}
    s_mov_b32 s29, 0x1ffff
    v_mov_b32 v6, {L_W}
    """)
    for r in range(F + 24, F + 48): e(f"v_mov_b32 v{r}, 0")
    e("s_mov_b32 s24, 8\ns_nop 0")
    for D in (AK, AV, AQ): e(f"v_mfma_f32_32x32x16_bf16 {vr(D,16)}, {vr(F+24,4)}, {vr(F+24,4)}, 0")
    if not not OPT.get("touch"):
        e("s_mov_b64 vcc, 1")
        for k in range(3): e(f"s_cmp_eq_u32 s20, {4+k}\ns_cbranch_scc1 L_tc_s{k}")
        e("s_branch L_tc_s3")
        e.label("L_tc_ret")
        e("s_mov_b64 vcc, 0")
    def rd(ks):
        f = F + 12 * ks; o = ks * 4096
        e(f"ds_read_b128 {vr(f,4)}, v{8+ks}")
        e(f"ds_read_b64_tr_b16 {vr(f+4,2)}, v12 offset:{o}")
        e(f"ds_read_b64_tr_b16 {vr(f+6,2)}, v12 offset:{o+512}")
        e(f"ds_read_b64_tr_b16 {vr(f+8,2)}, v12 offset:{o+1024}")
        e(f"ds_read_b64_tr_b16 {vr(f+10,2)}, v12 offset:{o+1536}")
    def mf(ks):
        f = F + 12 * ks
        e(f"v_mfma_f32_32x32x16_bf16 {vr(AK,16)}, {vr(f+4,4)}, {vr(f,4)}, {vr(AK,16)}")
        e(f"v_mfma_f32_32x32x16_bf16 {vr(AV,16)}, {vr(f,4)}, {vr(f+8,4)}, {vr(AV,16)}")
    e(";@tc[")
    e.label("L_cl")
    e("s_waitcnt lgkmcnt(0)")
    e("s_barrier")
    stamp(e, 2)
    rd(0); rd(1); mf(2); rd(2); mf(3)
    e("s_waitcnt lgkmcnt(10)")
    rd(3); mf(0)
    for ks in range(4): e(f"v_add_u32 v{8+ks}, 8192, v{8+ks}")
    e("v_add_u32 v12, 16384, v12\nv_and_or_b32 v12, v12, s29, v6")
    e("s_sub_u32 s24, s24, 1")
    e("s_waitcnt lgkmcnt(10)")
    mf(1)
    e("s_cmp_lg_u32 s24, 0\ns_cbranch_scc1 L_cl")
    e("s_waitcnt lgkmcnt(5)")
    mf(2)
    e("s_waitcnt lgkmcnt(0)")
    mf(3)
    for ks in range(4): e(f"v_subrev_u32 v{8+ks}, 0x10000, v{8+ks}")
    e("s_nop 6")
    e.c("K/V epilogue: publish (write-through) and stage own tiles in ring slot 0")
    T = F
    for j in range(8): e(f"v_cvt_pk_bf16_f32 v{T+j}, v{AK+2*j}, v{AK+2*j+1}")
    e(f"buffer_store_dwordx4 {vr(T,4)}, v15, s[12:15], s26 offen sc1")
    e(f"buffer_store_dwordx4 {vr(T+4,4)}, v15, s[12:15], s27 offen sc1")
    for j in range(8): e(f"v_cvt_pk_bf16_f32 v{T+8+j}, v{AV+2*j}, v{AV+2*j+1}")
    e(f"buffer_store_dwordx4 {vr(T+8,4)}, v7, s[12:15], s26 offen offset:1024 sc1")
    e(f"buffer_store_dwordx4 {vr(T+12,4)}, v7, s[12:15], s26 offen offset:1536 sc1")
    stamp(e, 3)
    e(f"ds_write_b128 v2, {vr(T,4)}")
    e(f"ds_write_b128 v2, {vr(T+4,4)} offset:{SLOT}")
    e(f"ds_write_b128 v5, {vr(T+8,4)} offset:1024")
    e(f"ds_write_b128 v5, {vr(T+12,4)} offset:1536")
    e.c("Q projection, two halves of 16 k-steps")
    FQ = F + 16
    def rdq(cc, ks):
        f = FQ + 8 * ks; o = cc * 8192 + ks * 2048
        e(f"ds_read_b128 {vr(f,4)}, v{8+ks} offset:{cc*8192}")
        e(f"ds_read_b64_tr_b16 {vr(f+4,2)}, v13 offset:{o}")
        e(f"ds_read_b64_tr_b16 {vr(f+6,2)}, v13 offset:{o+512}")
    def mfq(ks):
        f = FQ + 8 * ks
        e(f"v_mfma_f32_32x32x16_bf16 {vr(AQ,16)}, {vr(f+4,4)}, {vr(f,4)}, {vr(AQ,16)}")
    e("s_waitcnt lgkmcnt(0)")
    for (c0, c1) in ((0, 4), (4, 6), (6, 8)):
        e("s_barrier")
        for ks in range(4): rdq(c0, ks)
        for cc in range(c0, c1):
            for ks in range(4):
                e(f"s_waitcnt lgkmcnt({9 if cc < c1 - 1 else 3*(3-ks)})")
                mfq(ks)
                if cc < c1 - 1: rdq(cc + 1, ks)
        if c0 == 4:
            e("s_waitcnt vmcnt(0)")
            stamp(e, 4)
            e("s_barrier")
    e("s_nop 1")
    e("s_nop 9")
    for j in range(8): e(f"v_pk_mul_f32 {vr(AQ+2*j,2)}, {vr(AQ+2*j,2)}, s[30:31]")
    for j in range(8): e(f"v_cvt_pk_bf16_f32 v{AK+j}, v{AQ+2*j}, v{AQ+2*j+1}")
    e(f"ds_write_b128 v14, {vr(AK,4)}")
    e(f"ds_write_b128 v14, {vr(AK+4,4)} offset:2048")
    stamp(e, 5)

SCHED = ("e2 S0p e3 S1 e3 M e3 wv rk e1 r0 e1 r1 e1 pr e2", "e2 S0p e3 S1 e3 wl M e3 m0 xc xs e1 dk e1 dv e1 sa sn lc lt e2")
A_K, A_V0, A_V1, A_IDX, A_VG, A_KG, A_ONE, A_QX, A_MR, A_ML, A_MW, A_OUT, A_WO, A_O, A_ROW = range(144, 159)
XR = 160
def attn_setup(e):
    e(f"""
    s_and_b32 s40, s20, 3
    s_lshr_b32 s41, s20, 2
    s_lshl_b32 s42, s21, 2
    s_add_u32 s42, s42, s40
    s_mul_i32 s43, s42, {HS}
    s_lshl_b32 s44, s41, 11
    s_add_u32 s43, s43, s44
    s_add_u32 s8, s{P_WS}, s43
    s_addc_u32 s9, s{P_WS+1}, 0
    s_mov_b32 s10, 0x20000
    s_mov_b32 s11, 0x20000
    s_mul_i32 s48, s20, {SLOT}
    s_add_u32 s48, s48, {L_R}
    s_lshl_b32 s44, s40, 11
    s_lshl_b32 s46, s41, 10
    s_add_u32 s44, s44, s46
    s_add_u32 s44, s44, {L_QX}
    v_add_u32 v{A_QX}, s44, v15
    v_and_b32 v2, 0x33, v1
    v_bfe_u32 v3, v1, 2, 1
    v_lshl_or_b32 v2, v3, 3, v2
    v_bfe_u32 v3, v1, 3, 1
    v_lshl_or_b32 v2, v3, 2, v2
    v_lshlrev_b32 v{A_KG}, 4, v2
    v_add_u32 v{A_K}, s48, v{A_KG}
    v_and_b32 v2, 15, v1
    v_lshrrev_b32 v3, 5, v1
    v_lshl_add_u32 v2, v3, 4, v2
    v_lshlrev_b32 v{A_VG}, 4, v2
    v_add_u32 v2, 1024, v{A_VG}
    v_add_u32 v6, 1536, v{A_VG}
    v_and_b32 v5, 27, v1
    v_cmp_eq_u32 s[46:47], 16, v5
    v_mov_b32 v4, 2064
    v_mov_b32 v5, 2048
    v_cndmask_b32 v4, v4, v5, s[46:47]
    v_and_b32 v5, 16, v1
    v_cmp_ne_u32 vcc, 0, v5
    v_mov_b32 v{A_IDX}, 0xdddddddd
    v_and_b32 v7, 3, v1
    v_cndmask_b32 v2, v2, v4, vcc
    v_cndmask_b32 v6, v6, v4, vcc
    v_add_u32 v{A_V0}, s48, v2
    v_add_u32 v{A_V1}, s48, v6
    v_mul_u32_u24 v2, {SSTR}, v7
    v_add_u32 v{A_ONE}, s48, v2
    s_lshl_b32 s49, 1, s22
    s_mov_b32 s50, {int(OPT.get('iters', 8))}
    s_xor_b32 s46, s20, 4
    s_mul_i32 s46, s46, {SLOT}
    s_add_u32 s46, s46, {L_R}
    v_add_u32 v{A_MR}, s46, v{A_KG}
    v_lshlrev_b32 v4, 2, v1
    v_add_u32 v{A_ML}, s46, v4
    v_add_u32 v{A_MW}, s48, v4
    s_lshl_b32 s45, s22, 16
    s_lshl_b32 s51, s42, 10
    s_add_u32 s51, s51, s45
    s_lshl_b32 s47, s41, 15
    s_add_u32 s51, s51, s47
    s_add_u32 s51, s51, {WS_OF:#x}
    s_and_b32 s40, s20, 1
    s_bfe_u32 s41, s20, 0x10001
    s_lshl_b32 s45, s68, 16
    v_and_b32 v2, 31, v1
    s_lshl_b32 s43, s40, 5
    v_add_u32 v{A_ROW}, s43, v2
    v_lshlrev_b32 v2, 10, v{A_ROW}
    v_lshl_add_u32 v{A_OUT}, v3, 5, v2
    s_lshl_b32 s64, s41, 6
    s_lshl_b32 s44, s69, 7
    s_add_u32 s64, s64, s44
    s_add_u32 s64, s64, s45
    v_bfe_u32 v4, v1, 4, 1
    v_bfe_u32 v5, v1, 2, 2
    v_and_b32 v6, 1, v1
    v_bfe_u32 v7, v1, 3, 1
    v_xor_b32 v7, s41, v7
    v_lshlrev_b32 v2, 6, v7
    v_lshl_add_u32 v2, v6, 5, v2
    v_lshl_add_u32 v2, v4, 4, v2
    v_bfe_u32 v7, v1, 1, 1
    v_lshl_add_u32 v2, v7, 3, v2
    v_lshl_add_u32 v2, v5, 7, v2
    v_lshl_add_u32 v{A_WO}, v3, 9, v2
    s_lshl_b32 s44, s40, 10
    s_add_u32 s44, s44, {L_W}
    v_add_u32 v{A_O}, s44, v15
    s_lshl_b32 s65, s41, 7
    s_and_b32 s44, s20, 3
    s_lshl_b32 s66, s44, 11
    s_add_u32 s66, s66, s45
    s_add_u32 s66, s66, {WS_OF:#x}
    s_lshl_b32 s67, s44, 12
    s_add_u32 s67, s67, {L_W}
    """)

def attention(e):
    SA, SB, OA, OB = 16, 32, 48, 64
    QA, QB = 80, 84
    K = (88, 92); V0 = (96, 100); V1 = (104, 108)
    def ex(S, a, b):
        for i in range(a, b): e(f"v_exp_f32 v{S+i}, v{S+i}")
    def smf(O, V, S):
        e(f"v_smfmac_f32_32x32x32_bf16 {vr(O,16)}, {vr(V,4)}, {vr(S,8)}, v{A_IDX}")
    def dma(s):
        return [f"s_add_u32 m0, s48, {ringoff(s)}", "s_lshl_b32 s97, s96, 12", "s_and_b32 s97, s97, 0x8001f000",
                "buffer_load_dwordx4 v15, s[8:11], s97 offen sc1 lds",
                "buffer_load_dwordx4 v15, s[8:11], s97 offen offset:1024 sc1 lds",
                "s_bitset0_b64 s[94:95], s96", "s_ff1_i32_b64 s96, s[94:95]"]
    def tile(i, sched, wv=6, dslot=None, xslot=None, last=False, fl=None):
        p = i & 1; q = p ^ 1
        ro = ringoff((i + 1) % 4)
        d = dma((i + 1) % 4 if dslot is None else dslot)
        T = {
          "pr": f"s_setprio {3-i}",
          "wv": f"s_waitcnt vmcnt({wv})", "wl": "s_waitcnt lgkmcnt(0)",
          "rk": f"ds_read_b128 {vr(K[q],4)}, v{A_K} offset:{ro}",
          "r0": f"ds_read_b128 {vr(V0[q],4)}, v{A_V0} offset:{ro}",
          "r1": f"ds_read_b128 {vr(V1[q],4)}, v{A_V1} offset:{ro}",
          "m0": d[0], "xc": d[1], "xs": d[2], "dk": d[3], "dv": d[4], "sa": d[5], "sn": d[6],
          "F": fl,
          "lc": "s_sub_u32 s50, s50, 1" if last else None,
          "lt": "s_cmp_lg_u32 s50, 0" if last else None,
          "X": "\n".join(dma(xslot)) if xslot is not None else None,
        }
        for (seq, S, So, Oo, Kn, Qo, Vp0, Vp1) in ((sched[0], SA, SB, OB, K[p], QB, V0[q], V1[q]),
                                                   (sched[1], SB, SA, OA, K[q], QA, V0[p], V1[p])):
            n = 0
            for t in seq.split():
                if t[0] == "e" and t[1:].isdigit(): ex(S, n, n + int(t[1:])); n += int(t[1:])
                elif t == "S1": smf(Oo, Vp1, So + 8)
                elif t == "S0p": smf(Oo, Vp0, So)
                elif t == "M": e(f"v_mfma_f32_32x32x16_bf16 {vr(So,16)}, {vr(Kn,4)}, {vr(Qo,4)}, 0")
                elif T[t] is not None: e(T[t])
            assert n == 16
    e.label("L_b10")
    e(f"""
    ds_read_b128 {vr(K[0],4)}, v{A_K} offset:{ringoff(0)}
    ds_read_b128 {vr(V0[0],4)}, v{A_V0} offset:{ringoff(0)}
    ds_read_b128 {vr(V1[0],4)}, v{A_V1} offset:{ringoff(0)}
    """)
    for r in range(V0[1], V0[1] + 4): e(f"v_mov_b32 v{r}, 0")
    for r in range(4, 8): e(f"v_mov_b32 v{r}, 0x3f803f80")
    e(f"v_xor_b32 v3, 1024, v{A_QX}")
    for D in (OA, OB): e(f"v_mfma_f32_32x32x16_bf16 {vr(D,16)}, {vr(V0[1],4)}, {vr(V0[1],4)}, 0")
    e(f"v_mov_b32 v8, {L_RM}")
    e("s_setprio 3")
    e("s_waitcnt lgkmcnt(0)")
    e("s_barrier")
    stamp(e, 6)
    e(f"""
    ds_read_b32 v9, v8
    ds_read_b128 {vr(QA,4)}, v3
    ds_read_b128 {vr(QB,4)}, v{A_QX}
    ds_write_b128 v{A_ONE}, v[4:7] offset:2048
    ds_write_b128 v{A_ONE}, {vr(V0[1],4)} offset:2064
    s_waitcnt lgkmcnt(4)
    v_readfirstlane_b32 s94, v9
    s_waitcnt lgkmcnt(3)
    v_mfma_f32_32x32x16_bf16 {vr(SA,16)}, {vr(K[0],4)}, {vr(QA,4)}, 0
    s_not_b32 s95, s94
    s_andn2_b32 s94, s94, s49
    s_ff1_i32_b64 s96, s[94:95]
    s_waitcnt lgkmcnt(2)
    v_mfma_f32_32x32x16_bf16 {vr(SB,16)}, {vr(K[0],4)}, {vr(QB,4)}, 0
    """)
    for t in dma(1): e(t)
    if OPT.get("pst"): stamp(e, 1)
    e.c("own key tile (peeled): nothing here waits for remote data; the ring is filled gradually over three tiles")
    ex(SA, 0, 16)
    for t in dma(2): e(t)
    ex(SB, 0, 2); smf(OA, V0[0], SA); ex(SB, 2, 6); smf(OA, V1[0], SA + 8); ex(SB, 6, 10)
    if OPT.get("pst"): stamp(e, 2)
    e("s_waitcnt vmcnt(2)")
    if OPT.get("pst"): stamp(e, 3)
    e(f"""
    ds_read_b128 {vr(K[1],4)}, v{A_K} offset:{ringoff(1)}
    ds_read_b128 {vr(V0[1],4)}, v{A_V0} offset:{ringoff(1)}
    ds_read_b128 {vr(V1[1],4)}, v{A_V1} offset:{ringoff(1)}
    """)
    ex(SB, 10, 16)
    e(f"""
    s_waitcnt lgkmcnt(2)
    v_mfma_f32_32x32x16_bf16 {vr(SA,16)}, {vr(K[1],4)}, {vr(QA,4)}, 0
    """)
    for t in dma(3): e(t)
    e("s_setprio 2\ns_waitcnt lgkmcnt(0)\ns_nop 2")
    if OPT.get("pst"): stamp(e, 4)
    PS = (SCHED[0].replace("M e3 wv", "M e3 X wv").replace(" pr ", " F pr "), SCHED[1])
    tile(1, PS, wv=4, dslot=1, xslot=0)
    tile(2, PS, wv=6, dslot=3, xslot=2, fl="ds_read_b32 v9, v8")
    if OPT.get("pst"): stamp(e, 5)
    e.c("from here on chunks that were not ready at the start may be fetched: every chunk must have been published")
    e.label("L_full")
    e("""
    v_readfirstlane_b32 s97, v9
    s_cmp_eq_u32 s97, -1
    s_cbranch_scc1 L_loop3
    ds_read_b32 v9, v8
    s_sleep 2
    s_waitcnt lgkmcnt(0)
    s_branch L_full
    """)
    e(".p2align 6")
    e.label("L_loop")
    for i in range(4):
        if i == 3: e.label("L_loop3")
        tile(i, SCHED, last=(i == 3))
    e("s_cbranch_scc1 L_loop")
    e(";@tc]")
    e("s_setprio 0")
    smf(OB, V0[1], SB)
    smf(OB, V1[1], SB + 8)
    stamp(e, 7)
    e.c("merge the two key halves: hand tile A to the partner wave, finalise tile B")
    e(f"""
    s_waitcnt vmcnt(0)
    ds_write_b32 v{A_MW}, v{OA+8} offset:{SSTR}
    ds_write_b128 v{A_K}, {vr(OA,4)}
    ds_write_b128 v{A_K}, {vr(OA+4,4)} offset:1024
    s_waitcnt lgkmcnt(0)
    s_barrier
    """)
    tstamp(e, 1)
    e(f"""
    ds_read_b32 v{SA+8}, v{A_ML} offset:{SSTR}
    ds_read_b128 {vr(SA,4)}, v{A_MR}
    ds_read_b128 {vr(SA+4,4)}, v{A_MR} offset:1024
    s_nop 2
    s_waitcnt lgkmcnt(2)
    v_add_f32 v{OB+8}, v{OB+8}, v{SA+8}
    v_rcp_f32 v2, v{OB+8}
    s_waitcnt lgkmcnt(0)
    """)
    for j in range(4): e(f"v_pk_add_f32 {vr(OB+2*j,2)}, {vr(OB+2*j,2)}, {vr(SA+2*j,2)}")
    e.label("L_fin")
    for j in range(4): e(f"v_pk_mul_f32 {vr(SA+2*j,2)}, {vr(OB+2*j,2)}, v[2:3] op_sel_hi:[1,0]")
    for j in range(4): e(f"v_cvt_pk_bf16_f32 v{4+j}, v{SA+2*j}, v{SA+2*j+1}")
    e("buffer_store_dwordx4 v[4:7], v15, s[12:15], s51 offen sc1")
    tstamp(e, 2)
    e.c("softmax guard: the fast path used a zero shift; it is exact only while the row sum is well inside the")
    e.c("fp32/bf16 range and nothing overflowed.  Otherwise redo this tile with the true row maximum and store again")
    e.c("(nothing is published before the barrier below).  s50 = 0 on the first visit, 1 after the fallback.")
    e(f"v_mul_f32 v2, 0, v{OB}")
    for j in range(1, 8): e(f"v_fmac_f32 v2, 0, v{OB+j}")
    e(f"""
    v_add_f32 v2, v2, v{OB+8}
    v_cmp_nle_f32 vcc, 0x33800000, v2
    v_mov_b32 v3, 0x57800000
    v_cmp_nle_f32 s[30:31], v2, v3
    s_or_b64 vcc, vcc, s[30:31]
    s_cbranch_vccz L_ok
    s_cmp_eq_u32 s50, 0
    s_cbranch_scc1 L_fallback
    """)
    e.label("L_ok")
    e("""
    s_cmp_lt_u32 s20, 4
    s_cbranch_scc1 L_p3
    """)
    e("""
    s_add_u32 s31, s66, 1024
    s_add_u32 s30, s66, 31744
    s_sub_u32 s31, s66, 1024
    s_add_u32 s32, s66, 30720
    s_waitcnt vmcnt(0)
    s_barrier
    s_barrier
    """)
    stamp(e, 8)
    def oq(q):
        e(f"""
        s_add_u32 m0, s67, {q*16384}
        s_nop 0
        buffer_load_dwordx4 v15, s[12:15], s66 offen sc1 lds
        buffer_load_dwordx4 v15, s[12:15], s30 offen offset:1024 sc1 lds
        buffer_load_dwordx4 v15, s[12:15], s31 offen offset:2048 sc1 lds
        buffer_load_dwordx4 v15, s[12:15], s32 offen offset:3072 sc1 lds
        """)
        if q < 3: e("s_add_u32 s66, s66, 8192\ns_add_u32 s30, s30, 8192\ns_add_u32 s31, s31, 8192\ns_add_u32 s32, s32, 8192")
    oq(0); oq(1); oq(2)
    e("s_waitcnt vmcnt(8)\ns_barrier")
    oq(3)
    e("s_waitcnt vmcnt(8)\ns_barrier\ns_waitcnt vmcnt(4)\ns_barrier\ns_waitcnt vmcnt(0)\ns_barrier")
    stamp_out(e)
    e("s_endpgm")
    e.label("L_p3")
    WF, OF, ACC = 32, 128, 16
    def rdw(h):
        f = WF + 4 * (h % 24)
        e(f"ds_read_b64_tr_b16 {vr(f,2)}, v{A_WO} offset:{h*2048}")
        e(f"ds_read_b64_tr_b16 {vr(f+2,2)}, v{A_WO} offset:{h*2048+1024}")
    e("s_waitcnt vmcnt(0)\ns_barrier")
    tstamp(e, 3)
    for h in range(24):
        if h >= 7: e("s_waitcnt lgkmcnt(12)")
        rdw(h)
    e(f"""
    v_mov_b32 v4, {L_MS}
    s_waitcnt lgkmcnt(8)
    ds_read_b32 v5, v4
    v_lshrrev_b32 v3, 5, v1
    v_lshl_add_u32 v4, v3, 6, v4
    v_add_u32 v4, s65, v4
    s_lshl_b32 s29, s68, 8
    s_add_u32 s29, s29, {WS_G:#x}
    v_lshlrev_b32 v14, 2, v{A_ROW}
    """)
    srd(e, 16, P_OUT, 0x200000)
    e("s_waitcnt lgkmcnt(0)\ns_barrier")
    stamp(e, 8)
    e("buffer_load_dword v6, v14, s[12:15], s29 offen sc1")
    def rdo(h):
        e(f"ds_read_b128 {vr(OF + 4*(h%4),4)}, v{A_O} offset:{h*2048}")
    for q in range(4):
        e("s_barrier")
        if q == 0: tstamp(e, 4)
        if q == 3: tstamp(e, 5)
        for k in range(4): rdo(8*q + k)
        for k in range(8):
            h = 8*q + k
            later = 0
            for kk in range(max(0, k-3), k):
                later += (1 if kk + 4 < 8 and kk + 4 > k else 0) + (2 if q == 0 else 0)
            later += max(0, 3 - k)
            if q == 0 and k >= 4: later += 2
            e(f"s_waitcnt lgkmcnt({later})")
            e(f"v_mfma_f32_32x32x16_bf16 {vr(ACC,16)}, {vr(WF+4*(h%24),4)}, {vr(OF+4*(h%4),4)}, {'0' if h == 0 else vr(ACC,16)}")
            if k + 4 < 8: rdo(h + 4)
            if q == 0: rdw(24 + k)
    e.c("out = b + g*(a-b),  b = x (+ sigmoid(r)*y on the routed row)")
    for j in range(8):
        e(f"v_lshlrev_b32 v{64+2*j}, 16, v{XR+j}")
        e(f"v_and_b32 v{65+2*j}, 0xffff0000, v{XR+j}")
    e(f"""
    v_cmp_eq_u32 vcc, v5, v{A_ROW}
    s_cbranch_vccz L_nomoe
    ds_read_b128 v[80:83], v4 offset:64
    ds_read_b128 v[84:87], v4 offset:80
    ds_read_b128 v[88:91], v4 offset:96
    ds_read_b128 v[92:95], v4 offset:112
    s_and_saveexec_b64 s[30:31], vcc
    s_waitcnt lgkmcnt(0)
    """)
    for j in range(16): e(f"v_add_f32 v{64+j}, v{64+j}, v{80+j}")
    e("s_mov_b64 exec, s[30:31]")
    e.label("L_nomoe")
    e("s_waitcnt vmcnt(0)")
    for j in range(8): e(f"v_pk_add_f32 {vr(ACC+2*j,2)}, {vr(ACC+2*j,2)}, {vr(64+2*j,2)} neg_lo:[0,1] neg_hi:[0,1]")
    for j in range(8): e(f"v_pk_fma_f32 {vr(64+2*j,2)}, {vr(ACC+2*j,2)}, v[6:7], {vr(64+2*j,2)} op_sel_hi:[1,0,1]")
    for j in range(8): e(f"v_cvt_pk_bf16_f32 v{ACC+j}, v{64+2*j}, v{65+2*j}")
    tstamp(e, 6)
    of = OPT.get("outf", "")
    e(f"buffer_store_dwordx4 {vr(ACC,4)}, v{A_OUT}, s[16:19], s64 offen {of}")
    e(f"buffer_store_dwordx4 {vr(ACC+4,4)}, v{A_OUT}, s[16:19], s64 offen offset:16 {of}")
    stamp_out(e)
    e("s_endpgm")

    M = OA
    e.label("L_fallback")
    e(f"""
    s_lshr_b32 s30, s20, 2
    s_lshl_b32 s30, s30, 11
    s_sub_u32 s8, s8, s30
    s_subb_u32 s9, s9, 0
    s_mov_b32 s30, 0
    v_mov_b32 v2, 0xff800000
    """)
    e.label("L_fb1")
    e(f"""
    buffer_load_dwordx4 {vr(K[0],4)}, v{A_KG}, s[8:11], s30 offen sc1
    s_waitcnt vmcnt(0)
    v_mfma_f32_32x32x16_bf16 {vr(SA,16)}, {vr(K[0],4)}, {vr(QB,4)}, 0
    s_add_u32 s30, s30, 2048
    s_nop 11
    """)
    for j in range(8): e(f"v_max3_f32 v2, v2, v{SA+2*j}, v{SA+2*j+1}")
    e("""
    s_cmp_lt_u32 s30, 0x20000
    s_cbranch_scc1 L_fb1
    v_mov_b32 v3, v2
    s_nop 1
    v_permlane32_swap_b32 v2, v3
    s_nop 1
    v_max_f32 v2, v2, v3
    """)
    for j in range(16): e(f"v_sub_f32 v{M+j}, 0, v2")
    for j in range(16): e(f"v_mov_b32 v{OB+j}, 0")
    for j in range(4): e(f"v_mov_b32 v{V0[0]+j}, 0x3f803f80\nv_mov_b32 v{V1[0]+j}, 0x3f803f80")
    e("s_mov_b32 s30, 0")
    e.label("L_fb2")
    e(f"""
    buffer_load_dwordx4 {vr(K[0],4)}, v{A_KG}, s[8:11], s30 offen sc1
    s_mov_b32 exec_lo, 0xffff
    s_mov_b32 exec_hi, 0xffff
    buffer_load_dwordx4 {vr(V0[0],4)}, v{A_VG}, s[8:11], s30 offen offset:1024 sc1
    buffer_load_dwordx4 {vr(V1[0],4)}, v{A_VG}, s[8:11], s30 offen offset:1536 sc1
    s_mov_b64 exec, -1
    s_waitcnt vmcnt(0)
    v_mfma_f32_32x32x16_bf16 {vr(SA,16)}, {vr(K[0],4)}, {vr(QB,4)}, {vr(M,16)}
    s_add_u32 s30, s30, 2048
    s_nop 11
    """)
    ex(SA, 0, 16)
    e("s_nop 1")
    smf(OB, V0[0], SA)
    smf(OB, V1[0], SA + 8)
    e("""
    s_cmp_lt_u32 s30, 0x20000
    s_cbranch_scc1 L_fb2
    s_nop 15
    s_mov_b32 s50, 1
    """)
    e(f"v_rcp_f32 v2, v{OB+8}\ns_nop 0\ns_branch L_fin")

def helper(e):
    e.label("L_help")
    common_srd(e)
    srd(e, 8, P_WR, 1024)
    srd(e, 16, P_GW, 1024)
    e("""
    s_lshl_b32 s24, s22, 3
    s_add_u32 s24, s24, s21
    s_lshl_b32 s25, s24, 13
    s_add_u32 s26, s25, 4096
    buffer_load_dwordx4 v[16:19], v15, s[8:11], 0 offen
    buffer_load_dwordx4 v[20:23], v15, s[16:19], 0 offen
    """)
    for r in range(8):
        e(f"buffer_load_dwordx4 {vr(24+4*r,4)}, v15, s[4:7], s{25 + r//4} offen offset:{(r%4)*1024}")
    epoch_load(e)
    e.c("address registers for later (computed while phase 1 waits for its first data)")
    e(f"""
    v_mov_b32 v56, 0
    v_lshlrev_b32 v61, 2, v1
    v_mul_u32_u24 v62, {CS}, v1
    v_lshrrev_b32 v2, 3, v1
    v_and_b32 v3, 7, v1
    v_lshlrev_b32 v4, 4, v3
    v_mul_u32_u24 v14, 2752, v2
    v_add_u32 v14, v14, v4
    v_lshl_add_u32 v58, v2, 10, v4
    v_bfe_u32 v4, v1, 4, 1
    v_lshlrev_b32 v4, 6, v4
    v_xor_b32 v59, v58, v4
    v_lshrrev_b32 v2, 4, v1
    v_bfe_u32 v3, v1, 2, 2
    v_and_b32 v4, 3, v1
    v_lshl_add_u32 v5, v2, 3, v3
    v_lshlrev_b32 v5, 7, v5
    v_lshl_add_u32 v5, v4, 3, v5
    v_add_u32 v60, {L_M}, v5
    v_lshlrev_b32 v2, 4, v2
    v_bfrev_b32 v4, 1
    """)
    for t in range(4):
        e(f"v_cmp_eq_u32 vcc, {t}, v3\ns_nop 1\nv_cndmask_b32 v{6+t}, v4, v2, vcc\nv_min_u32 v{10+t}, 128, v{6+t}\nv_add_u32 v{10+t}, {L_H}, v{10+t}")
    e(f"v_add_u32 v2, {L_H}, v61\nds_write_b32 v2, v56")
    epoch_tag(e)
    e.c("workgroup 0 initialises every sync line: {mask = 0, tag, mask = 0, tag}")
    e(f"""
    s_mul_i32 s34, s21, {CS}
    s_add_u32 s34, s34, {WS_C1:#x}
    s_mul_i32 s35, s22, {CS}
    s_add_u32 s35, s35, {WS_C2:#x}
    s_cmp_lg_u32 s2, 0
    s_cbranch_scc1 L_nl1
    v_mov_b32 v64, 0
    v_mov_b32 v65, s60
    v_mov_b32 v66, 0
    v_mov_b32 v67, s60
    s_mov_b32 s25, {WS_C2:#x}
    buffer_store_dwordx4 v[64:67], v62, s[12:15], s25 offen sc1
    s_mov_b64 exec, 0xff
    buffer_store_dwordx4 v[64:67], v62, s[12:15], s34 offen offset:2048 sc1
    s_waitcnt vmcnt(0)
    buffer_store_dwordx4 v[64:67], v62, s[12:15], s34 offen sc1
    s_mov_b64 exec, -1
    """)
    e.label("L_nl1")
    e("v_mov_b32 v4, 0\nv_mov_b32 v5, 0")
    if not not OPT.get("touch"):
        e("s_mov_b64 vcc, 1\ns_branch L_th_s0")
        e.label("L_th_ret")
    e("s_mov_b64 vcc, 0")
    e(";@th[")
    for r in range(8):
        e("s_barrier")
        if r == 0: e("s_waitcnt vmcnt(0)")
        if r == 6:
            e("s_mov_b64 exec, 1\nbuffer_load_dword v63, v56, s[12:15], s34 offen offset:4 sc1\ns_mov_b64 exec, -1")
        e("v_mov_b32 v2, 0\nv_mov_b32 v3, 0")
        for j in range(4):
            e(f"v_dot2c_f32_bf16 v2, v{24+4*r+j}, v{16+j}")
            e(f"v_dot2c_f32_bf16 v3, v{24+4*r+j}, v{20+j}")
        e("s_nop 2")
        for m in DPP6:
            e(f"v_add_f32_dpp v2, v2, v2 {m} bank_mask:0xf")
            e(f"v_add_f32_dpp v3, v3, v3 {m} bank_mask:0xf")
            e("s_nop 0")
        e(f"v_readlane_b32 s27, v2, 63\nv_readlane_b32 s28, v3, 63\ns_nop 2\nv_writelane_b32 v4, s27, {r}\nv_writelane_b32 v5, s28, {r}")
    e(";@th]")
    e.c("the sync line this workgroup ORs into first must carry this launch's tag")
    e(f"""
    s_setprio 3
    s_mov_b64 exec, 1
    s_waitcnt vmcnt(0)
    v_cmp_ne_u32 vcc, s60, v63
    s_cbranch_vccz L_pv_x
    """)
    poll(e, "pv", "buffer_load_dword v63, v56, s[12:15], s34 offen offset:4 sc1", "v_cmp_ne_u32 vcc, s60, v63", narrow=False)
    e(f"""
    s_mov_b64 exec, 0xff
    v_mul_f32 v5, {NLOG2E:#x}, v5
    v_exp_f32 v5, v5
    v_mov_b32 v2, v4
    v_add_f32 v5, 1.0, v5
    v_rcp_f32 v16, v5
    v_max_f32_dpp v2, v2, v2 row_shr:1 row_mask:0xf bank_mask:0xf
    s_nop 1
    v_max_f32_dpp v2, v2, v2 row_shr:2 row_mask:0xf bank_mask:0xf
    s_nop 1
    v_max_f32_dpp v2, v2, v2 row_shr:4 row_mask:0xf bank_mask:0xf
    s_lshl_b32 s26, s24, 5
    s_add_u32 s26, s26, {WS_G:#x}
    v_readlane_b32 s27, v2, 7
    s_lshl_b32 s29, s24, 3
    s_lshl_b32 s25, 1, s22
    v_cmp_eq_f32 vcc, s27, v4
    s_ff1_i32_b64 s28, vcc
    s_max_i32 s28, s28, 0
    s_add_u32 s28, s28, s29
    v_mov_b32 v18, s27
    v_mov_b32 v19, s28
    s_add_u32 s29, s29, {WS_RP:#x}
    v_mov_b32 v57, s25
    v_mov_b32 v4, -1
    v_mov_b32 v5, s60
    v_mov_b32 v63, 0
    v_mov_b32 v20, v57
    v_mov_b32 v21, {L_RM}
    s_mov_b64 exec, 1
    """)
    stamp(e, 8)
    e("""
    s_barrier
    s_barrier
    s_barrier
    buffer_atomic_or v20, v56, s[12:15], s34 offen sc0
    """)
    stamp(e, 5)
    NR = int(OPT.get("nr", 8))
    e(f"""
    s_barrier
    s_waitcnt vmcnt(0)
    v_or_b32 v63, v20, v57
    v_bcnt_u32_b32 v2, v63, 0
    v_cmp_gt_u32 vcc, {NR}, v2
    s_cbranch_vccz L_p1_y
    """)
    poll(e, "p1", "v_mov_b32 v63, 0\nbuffer_atomic_or v63, v56, s[12:15], s34 offen sc0", f"v_bcnt_u32_b32 v2, v63, 0\nv_cmp_gt_u32 vcc, {NR}, v2", narrow=False)
    e.label("L_p1_y")
    e("""
    ds_write_b32 v21, v63
    s_waitcnt lgkmcnt(0)
    s_barrier
    """)
    stamp(e, 6)
    e("""
    s_mov_b64 exec, 0xff
    buffer_store_dword v16, v61, s[12:15], s26 offen sc1
    s_mov_b64 exec, 1
    buffer_store_dwordx2 v[18:19], v56, s[12:15], s29 offen sc1
    v_cmp_ne_u32 vcc, -1, v63
    s_cbranch_vccz L_pf_x
    """)
    e(f"s_sleep {int(OPT.get('pfd', 10))}")
    poll(e, "pf", "v_mov_b32 v63, 0\nbuffer_atomic_or v63, v56, s[12:15], s34 offen sc0", "v_cmp_ne_u32 vcc, -1, v63", narrow=False, sleep=int(OPT.get("pfs", 4)))
    e("""
    ds_write_b32 v21, v4
    buffer_atomic_or v57, v56, s[12:15], s34 offen offset:2048
    s_mov_b64 exec, -1
    """)
    e(f"""
    s_lshr_b32 s64, s2, 3
    s_and_b32 s65, s2, 7
    {"s_branch L_noy" if OPT.get("nohelp") else ""}
    s_sleep {int(OPT.get('moed', 48))}
    """)
    def stage(P, size, voff, rowb, base, name):
        srd(e, 8, P, size)
        e(f"s_mov_b32 s29, {L_M}")
        e.label(f"L_st{name}")
        e(f"""
        s_mov_b32 m0, s29
        s_add_u32 s29, s29, 1024
        buffer_load_dwordx4 v{voff}, s[8:11], s27 offen lds
        s_add_u32 s27, s27, {8*rowb}
        s_cmp_lt_u32 s29, {L_M + 8192}
        s_cbranch_scc1 L_st{name}
        """)
    def frags(base):
        e("s_waitcnt vmcnt(0)")
        for f in range(8):
            o = (f // 4) * 4096 + (f % 4) * 32
            if f == 7: e("s_waitcnt lgkmcnt(8)")
            e(f"ds_read_b64_tr_b16 {vr(base+4*f,2)}, v60 offset:{o}")
            e(f"ds_read_b64_tr_b16 {vr(base+4*f+2,2)}, v60 offset:{o+512}")
        e("s_waitcnt lgkmcnt(0)")
    def wo_setup():
        srd(e, 16, P_WO, 0x80000)
        e("s_lshl_b32 s30, s68, 14\ns_mov_b32 s31, 0")
    def wo_batch(name, n):
        e(f"s_add_u32 s33, s31, {n}")
        e.label(f"L_wo{name}")
        e("""
        s_and_b32 s30, s30, 0xffff
        s_mov_b32 m0, s30
        s_lshl_b32 s32, s30, 3
        s_lshl_b32 s28, s69, 7
        s_add_u32 s32, s32, s28
        buffer_load_dwordx4 v59, s[16:19], s32 offen lds
        s_add_u32 s30, s30, 1024
        s_add_u32 s31, s31, 1
        s_cmp_lt_u32 s31, s33
        """)
        e(f"s_cbranch_scc1 L_wo{name}")
    wo_setup()
    e(f"""
    s_cmp_ge_u32 s2, {NMOE}
    s_cbranch_scc1 L_a0
    s_mul_i32 s66, s65, {64*2752}
    s_lshl_b32 s27, s64, 7
    s_add_u32 s66, s66, s27
    s_mov_b32 s27, s66
    """)
    stage(P_WG, 512 * 2752, 14, 2752, 64, "g")
    frags(64)
    e("s_mov_b32 s27, s66")
    stage(P_WU, 512 * 2752, 14, 2752, 96, "u")
    frags(96)
    e("s_lshl_b32 s27, s64, 16\ns_lshl_b32 s28, s65, 7\ns_add_u32 s27, s27, s28")
    stage(P_WD, 1376 * 1024, 58, 1024, 128, "d")
    frags(128)
    e("s_branch L_a1")
    e.label("L_a0")
    wo_batch("n", 8)
    e("""
    s_waitcnt vmcnt(0)
    s_cmp_lt_u32 s31, 56
    s_cbranch_scc1 L_a0
    """)
    e.label("L_a1")
    e(f"s_mov_b32 s25, {WS_C1:#x}\ns_mov_b64 exec, 0xff")
    poll(e, "pa", "buffer_load_dwordx2 v[2:3], v62, s[12:15], s25 offen offset:2048 sc1", "v_cmp_ne_u64 vcc, v[4:5], v[2:3]", sleep=16)
    e(f"""
    s_mov_b64 exec, -1
    s_mov_b32 s25, {WS_RP:#x}
    v_lshlrev_b32 v2, 5, v1
    buffer_load_dwordx4 v[16:19], v2, s[12:15], s25 offen sc1
    buffer_load_dwordx4 v[20:23], v2, s[12:15], s25 offen offset:16 sc1
    s_cmp_lg_u32 s2, 0
    s_cbranch_scc1 L_noep
    s_mov_b32 s27, {WS_EP:#x}
    s_mov_b64 exec, 1
    buffer_store_dword v5, v56, s[12:15], s27 offen
    s_mov_b64 exec, -1
    """)
    e.label("L_noep")
    e("s_waitcnt vmcnt(0)")
    e("""
    v_max_f32 v2, v16, v18
    v_max3_f32 v2, v2, v20, v22
    s_nop 1
    """)
    for m in DPP6: e(f"v_max_f32_dpp v2, v2, v2 {m} bank_mask:0xf\ns_nop 1")
    e("""
    v_readlane_b32 s62, v2, 63
    v_mov_b32 v3, 0x7fff
    s_nop 0
    """)
    for k in (22, 20, 18, 16):
        e(f"v_cmp_eq_f32 vcc, s62, v{k}\ns_nop 1\nv_cndmask_b32 v3, v3, v{k+1}, vcc")
    e("s_nop 1")
    for m in DPP6: e(f"v_min_u32_dpp v3, v3, v3 {m} bank_mask:0xf\ns_nop 1")
    e(f"""
    v_readlane_b32 s63, v3, 63
    s_nop 3
    s_min_u32 s63, s63, 2047
    """)
    stamp(e, 1)
    e(f"""
    s_cmp_ge_u32 s2, {NMOE}
    s_cbranch_scc1 L_worest
    s_lshl_b32 s27, s63, 10
    s_lshl_b32 s28, s65, 7
    s_add_u32 s27, s27, s28
    """)
    for f in range(8):
        e(f"buffer_load_dwordx4 {vr(16+4*f,4)}, v{6+f%4}, s[4:7], s27 offen offset:{(f//4)*64}")
    e("s_waitcnt vmcnt(0)")
    for f in range(8):
        e(f"v_mfma_f32_16x16x32_bf16 v[48:51], {vr(16+4*f,4)}, {vr(64+4*f,4)}, {'0' if f == 0 else 'v[48:51]'}")
        e(f"v_mfma_f32_16x16x32_bf16 v[52:55], {vr(16+4*f,4)}, {vr(96+4*f,4)}, {'0' if f == 0 else 'v[52:55]'}")
        if OPT.get("pace"): e(f"s_nop {OPT['pace']}")
    e(f"""
    s_lshl_b32 s66, s64, 12
    s_add_u32 s66, s66, {WS_P1:#x}
    s_lshl_b32 s27, s65, 9
    s_add_u32 s27, s27, s66
    s_mul_i32 s67, s64, {CS}
    s_add_u32 s67, s67, {WS_C3:#x}
    s_lshl_b32 s25, 1, s65
    v_mov_b32 v57, s25
    v_mov_b32 v4, 0xff
    buffer_store_dword v48, v61, s[12:15], s27 offen sc1
    buffer_store_dword v52, v61, s[12:15], s27 offen offset:256 sc1
    """)
    wo_batch("a", 8)
    e("""
    s_waitcnt vmcnt(0)
    s_mov_b64 exec, 1
    buffer_atomic_or v57, v56, s[12:15], s67 offen
    s_mov_b64 exec, -1
    """)
    wo_batch("b", 8)
    e("s_waitcnt vmcnt(0)")
    stamp(e, 2)
    e("s_mov_b64 exec, 1")
    poll(e, "pc", "buffer_load_dwordx2 v[2:3], v56, s[12:15], s67 offen sc1", "v_cmp_ne_u64 vcc, v[4:5], v[2:3]", narrow=False, sleep=16)
    e("s_mov_b64 exec, -1")
    for r in range(8):
        e(f"buffer_load_dword v{16+r}, v61, s[12:15], s66 offen offset:{r*512} sc1")
        e(f"buffer_load_dword v{24+r}, v61, s[12:15], s66 offen offset:{r*512+256} sc1")
    wo_batch("c", 8)
    e(f"""
    s_lshl_b32 s27, s64, 6
    s_sub_u32 s27, 1376, s27
    s_waitcnt vmcnt(8)
    v_pk_add_f32 v[16:17], v[16:17], v[18:19]
    v_pk_add_f32 v[20:21], v[20:21], v[22:23]
    v_pk_add_f32 v[24:25], v[24:25], v[26:27]
    v_pk_add_f32 v[28:29], v[28:29], v[30:31]
    v_pk_add_f32 v[16:17], v[16:17], v[20:21]
    v_pk_add_f32 v[24:25], v[24:25], v[28:29]
    v_add_f32 v16, v16, v17
    v_add_f32 v24, v24, v25
    v_mul_f32 v2, {NLOG2E:#x}, v16
    v_exp_f32 v2, v2
    v_cmp_gt_u32 vcc, s27, v1
    v_add_f32 v2, 1.0, v2
    v_rcp_f32 v2, v2
    v_mul_f32 v16, v16, v24
    v_lshrrev_b32 v3, 1, v61
    v_mul_f32 v2, v2, v16
    v_cndmask_b32 v2, 0, v2, vcc
    v_add_u32 v3, {L_H}, v3
    v_cvt_pk_bf16_f32 v2, v2, v2
    ds_write_b16 v3, v2
    """)
    for f in range(8):
        e(f"ds_read_b128 {vr(16+4*f,4)}, v{10+f%4} offset:{(f//4)*64}")
    e("s_waitcnt lgkmcnt(0)")
    for f in range(8):
        e(f"v_mfma_f32_16x16x32_bf16 v[48:51], {vr(16+4*f,4)}, {vr(128+4*f,4)}, {'0' if f == 0 else 'v[48:51]'}")
        if OPT.get("pace"): e(f"s_nop {OPT['pace']}")
    e(f"""
    s_mul_i32 s27, s65, 5632
    s_lshl_b32 s28, s64, 8
    s_add_u32 s27, s27, s28
    s_add_u32 s27, s27, {WS_YP:#x}
    s_mul_i32 s67, s65, {CS}
    s_add_u32 s67, s67, {WS_C4:#x}
    s_lshl_b32 s25, 1, s64
    v_mov_b32 v57, s25
    buffer_store_dword v48, v61, s[12:15], s27 offen sc1
    """)
    wo_batch("d", 8)
    e("""
    s_waitcnt vmcnt(0)
    s_mov_b64 exec, 1
    buffer_atomic_or v57, v56, s[12:15], s67 offen
    s_mov_b64 exec, -1
    """)
    stamp(e, 3)
    e.label("L_worest")
    wo_batch("r", 8)
    e("""
    s_waitcnt vmcnt(0)
    s_cmp_lt_u32 s31, 64
    s_cbranch_scc1 L_worest
    """)
    stamp(e, 4)
    e(f"""
    s_lshl_b32 s27, s68, 6
    s_sub_u32 s63, s63, s27
    v_mov_b32 v2, s63
    v_mov_b32 v3, {L_MS}
    ds_write_b32 v3, v2
    s_cmp_ge_u32 s63, 64
    s_cbranch_scc1 L_noy
    s_mul_i32 s67, s69, {CS}
    s_add_u32 s67, s67, {WS_C4:#x}
    v_mov_b32 v4, 0x3fffff
    s_mov_b64 exec, 1
    """)
    poll(e, "pm", "buffer_load_dwordx2 v[2:3], v56, s[12:15], s67 offen sc1", "v_cmp_ne_u64 vcc, v[4:5], v[2:3]", narrow=False, sleep=16)
    e(f"""
    s_mov_b64 exec, -1
    s_mul_i32 s27, s69, 5632
    s_add_u32 s27, s27, {WS_YP:#x}
    s_add_u32 s28, s27, 4096
    """)
    for c in range(22):
        e(f"buffer_load_dword v{16+c}, v61, s[12:15], s{27 + c//16} offen offset:{(c%16)*256} sc1")
    e(f"""
    v_mov_b32 v6, s62
    v_mul_f32 v6, {NLOG2E:#x}, v6
    v_exp_f32 v6, v6
    v_add_u32 v3, {L_MS}, v61
    v_add_f32 v6, 1.0, v6
    v_rcp_f32 v6, v6
    s_waitcnt vmcnt(0)
    """)
    for c in range(1, 11): e(f"v_pk_add_f32 v[16:17], v[16:17], {vr(16+2*c,2)}")
    e("""
    v_add_f32 v16, v16, v17
    v_mul_f32 v16, v16, v6
    ds_write_b32 v3, v16 offset:64
    """)
    e.label("L_noy")
    e(f"""
    s_lshl_b32 s25, 1, s21
    v_mov_b32 v57, s25
    v_mov_b32 v4, 0xff
    s_mul_i32 s26, s68, {CS}
    s_add_u32 s26, s26, {WS_C2:#x}
    s_mov_b64 exec, 1
    s_waitcnt lgkmcnt(0)
    """)
    stamp(e, 7)
    e("""
    s_barrier
    s_barrier
    buffer_atomic_or v57, v56, s[12:15], s35 offen
    """)
    if OPT.get("p2d"): e(f"s_sleep {OPT['p2d']}")
    if OPT.get("p2load"):
        poll(e, "p2", "buffer_load_dwordx2 v[2:3], v56, s[12:15], s26 offen sc1", "v_cmp_ne_u64 vcc, v[4:5], v[2:3]", narrow=False, sleep=int(OPT.get("p2s", 0)))
    else:
        poll(e, "p2", "v_mov_b32 v2, 0\nbuffer_atomic_or v2, v56, s[12:15], s26 offen sc0", "v_cmp_ne_u32 vcc, v4, v2", narrow=False, sleep=int(OPT.get("p2s", 0)))
    e("s_barrier")
    stamp_out(e)
    e.label("L_end")
    e("s_endpgm")

def main(path):
    e = Asm()
    kn = NAME + "_kernel"
    e(f".globl {kn}\n.p2align 8\n.type {kn},@function")
    e.label(kn)
    entry(e)
    producer(e)
    compute(e)
    attention(e)
    helper(e)
    for p in check_text(e.text()): print("HAZARD", p)
    if not not OPT.get("touch"):
        touch_chain(e, "tc", 4); touch_chain(e, "th", 1)
    body = e.text()
    hdr = f"""; gated mix of an MHA block and a top-1 routed FFN branch, gfx950: one persistent launch.
; @launch grid=(256,1,1) block=(576,1,1) lds={LDS_TOTAL}
.amdgcn_target "amdgcn-amd-amdhsa--gfx950"
.text
"""
    tail = f""".section .rodata,"a"
.p2align 6
.amdhsa_kernel {kn}
  .amdhsa_next_free_vgpr 168
  .amdhsa_next_free_sgpr 102
  .amdhsa_accum_offset 168
  .amdhsa_group_segment_fixed_size 0
  .amdhsa_kernarg_size 96
  .amdhsa_user_sgpr_count 2
  .amdhsa_user_sgpr_kernarg_segment_ptr 1
  .amdhsa_system_sgpr_workgroup_id_x 1
.end_amdhsa_kernel
"""
    open(path, "w").write(hdr + body + tail)

if __name__ == "__main__":
    for o in sys.argv[2:]:
        if "=" in o: OPT[o.split("=")[0]] = o.split("=")[1]
        else: OPT[o] = True
    INSTR = bool(OPT.get("instr"))
    main(sys.argv[1])
```

```python
import sys
from asmlib import *

NAME = "gated_mix__mha_block__moe_arch_mod__prompt"
OPT = {}
HS     = 0x20000
WS_KV  = 0x000000
WS_OF  = 0x600000
WS_G   = 0x802000
WS_P1  = 0x830000
WS_YP  = 0x850000
WS_EP  = 0x808000
CS = 4352
WS_C1  = 0x8C0000
WS_C2  = WS_C1 + 8 * CS
WS_C3  = WS_C2 + 32 * CS
WS_C4  = WS_C3 + 24 * CS
WS_DBG = 0x880000
WS_SIZE = 0x920000
QSCALE = 0x3EB8AA3B
NLOG2E = 0xBFB8AA3B
NMOE = 176
L_X = 0; L_W = 65536
SLOT = 2304; L_R = 131072
L_QX = 149504
L_MS = L_QX + 8192
L_M = 65536
L_RM = L_MS + 16
L_H = L_MS + 512
L_WV = L_MS + 1024
LDS_TOTAL = 163840
POLL_MAX = 1 << 17

INSTR = False
def stamp(e, i, force=False):
    import inspect
    if OPT.get("est") and i in (2, 3, 4, 5) and "est" not in (inspect.stack()[1].code_context[0]): return
    if INSTR: e(f"{'s_memrealtime' if OPT.get('rt') else 's_memtime'} s[{70+2*i}:{71+2*i}]")
def tstamp(e, i):
    if OPT.get("tail"): stamp(e, i)
def gate(e, name):
    if not OPT.get(name): return
    e.label(f"L_gate_{name}")
    e(f"""
    s_memrealtime s[92:93]
    s_waitcnt lgkmcnt(0)
    s_sub_u32 s92, s92, s90
    s_cmp_lt_u32 s92, {int(float(OPT[name]) * 100)}
    s_cbranch_scc1 L_gate_{name}
    """)
def stamp_init(e):
    if not INSTR and any(k.startswith("g_") for k in OPT): e("s_memrealtime s[90:91]")
    if INSTR:
        e("s_memrealtime s[90:91]")
        for i in range(10): e(f"s_mov_b64 s[{70+2*i}:{71+2*i}], 0")
        stamp(e, 0)
def stamp_out(e):
    if not INSTR: return
    e("s_waitcnt vmcnt(0)")
    stamp(e, 9)
    e("s_memrealtime s[92:93]")
    e("s_waitcnt lgkmcnt(0)")
    e("s_mov_b64 exec, 1")
    e("s_lshl_b32 s96, s2, 4\ns_add_u32 s96, s96, s20\ns_lshl_b32 s96, s96, 6")
    e(f"s_add_u32 s96, s96, {WS_DBG:#x}")
    for i in range(10): e(f"v_mov_b32 v{4+i}, s{70+2*i}")
    e("v_mov_b32 v14, s90\nv_mov_b32 v15, s92\nv_mov_b32 v2, 0")
    for i in range(3): e(f"buffer_store_dwordx4 v[{4+4*i}:{7+4*i}], v2, s[12:15], s96 offen offset:{16*i}")

def isize(l):
    p = parse(l)
    if p is None: return 0
    if p["op"] in ("v_exp_f32", "s_waitcnt", "s_barrier", "s_nop", "s_setprio", "v_dot2c_f32_bf16") or p["op"].startswith(("s_cbranch", "s_branch")): return 4
    return 8
def touch_chain(e, name, nseg, step=None):
    step = step or int(OPT.get("tstep", 128))
    L = e.lines
    a = L.index(f";@{name}["); b = L.index(f";@{name}]")
    pts = [a + 1]; acc = 0
    for i in range(a + 1, b):
        acc += isize(L[i])
        prev = L[i].strip()
        if acc >= step - 4 and not prev.startswith(("s_cmp", "s_branch", "s_endpgm")) and isize(L[i]):
            pts.append(i + 1); acc = 0
    n = len(pts); firsts = [(k * n) // nseg for k in range(nseg)]
    out = L[:a + 1]; k = 0
    for i in range(a + 1, b + 1):
        if k < n and pts[k] == i:
            tgt = f"L_{name}_ret" if (k + 1 == n or k + 1 in firsts) else f"L_{name}_{k+1}"
            if k in firsts: out.append(f"L_{name}_s{firsts.index(k)}:")
            out.append(f"L_{name}_{k}:"); out.append(f"    s_cbranch_vccnz {tgt}"); k += 1
        out.append(L[i])
    e.lines = out + L[b + 1:]

def srd(e, d, base, size):
    e(f"s_mov_b32 s{d}, s{base}\ns_mov_b32 s{d+1}, s{base+1}\ns_mov_b32 s{d+2}, {size:#x}\ns_mov_b32 s{d+3}, 0x20000")

DPP6 = ("row_shr:1 row_mask:0xf", "row_shr:2 row_mask:0xf", "row_shr:4 row_mask:0xf", "row_shr:8 row_mask:0xf",
        "row_bcast:15 row_mask:0xa", "row_bcast:31 row_mask:0xc")
P_X, P_WQKV, P_WO, P_WR, P_WG, P_WU, P_WD, P_GW, P_OUT, P_DBG, P_WS = 36, 38, 40, 44, 46, 48, 50, 52, 54, 56, 58

def poll(e, name, load, cmp_, sleep=0, narrow=True, lowprio=None):
    e("s_mov_b32 s61, 0")
    e.label(f"L_{name}")
    e(load)
    e(f"s_add_u32 s61, s61, 1\ns_cmp_gt_u32 s61, {POLL_MAX}\ns_cbranch_scc1 L_{name}_x")
    e("s_waitcnt vmcnt(0)")
    if lowprio is not None: e("s_setprio 3")
    e(cmp_)
    if lowprio is not None: e(f"s_setprio {lowprio}")
    e(f"s_cbranch_vccz L_{name}_x")
    if narrow: e("s_mov_b64 exec, vcc")
    if sleep: e(f"s_sleep {sleep}")
    e(f"s_branch L_{name}")
    e.label(f"L_{name}_x")
    e("s_waitcnt vmcnt(0)")

def entry(e):
    e("""
    s_cmp_ge_u32 s2, 256
    s_cbranch_scc1 L_end
    """)
    stamp_init(e)
    e("""
    s_load_dwordx16 s[36:51], s[0:1], 0
    s_load_dwordx8 s[52:59], s[0:1], 64
    """)
    if not OPT.get("nopf"):
        e.c("pull the whole kernel text towards the L2 while the kernel arguments are in flight (one dword per 32 B of code)")
        e("s_getpc_b64 s[62:63]")
        e.label("L_text0")
        e("""
        v_lshrrev_b32 v2, 6, v0
        v_lshlrev_b32 v3, 5, v0
        v_readfirstlane_b32 s20, v2
        v_min_u32 v3, L_end-L_text0, v3
        s_lshr_b32 s29, s2, 3
        s_xor_b32 s28, s29, s20
        s_and_b32 s28, s28, PFMASK
        s_cbranch_scc1 L_nopf
        global_load_dword v159, v3, s[62:63]
        """.replace("PFMASK", str(OPT.get("pfm", 0))))
        e.label("L_nopf")
    e("""
    v_and_b32 v1, 63, v0
    s_and_b32 s28, s2, 7
    s_and_b32 s21, s28, 1
    s_lshl_b32 s21, s21, 2
    s_and_b32 s30, s29, 3
    s_add_u32 s21, s21, s30
    s_lshr_b32 s22, s28, 1
    s_lshl_b32 s22, s22, 3
    s_lshr_b32 s31, s29, 2
    s_add_u32 s22, s22, s31
    s_lshl_b32 s23, s30, 1
    s_add_u32 s23, s23, s31
    s_lshl_b32 s68, s28, 2
    s_add_u32 s68, s68, s30
    s_mov_b32 s69, s31
    v_lshlrev_b32 v15, 4, v1
    """)

def common_srd(e):
    e("s_waitcnt lgkmcnt(0)")
    srd(e, 4, P_X, 0x200000)
    srd(e, 12, P_WS, WS_SIZE)
def epoch_load(e):
    e(f"s_add_u32 s62, s{P_WS}, {WS_EP:#x}\ns_addc_u32 s63, s{P_WS+1}, 0\ns_load_dword s60, s[62:63], 0")
def epoch_tag(e):
    e("s_waitcnt lgkmcnt(0)\ns_mul_i32 s60, s60, 0x9E3779B1\ns_add_u32 s60, s60, 0x7F4A7C15")

def producer(e):
    e(f"""
    v_lshrrev_b32 v2, 3, v1
    v_and_b32 v3, 7, v1
    v_lshrrev_b32 v4, 4, v1
    v_xor_b32 v5, v3, v4
    v_lshlrev_b32 v5, 4, v5
    v_lshl_add_u32 v10, v2, 10, v5
    v_xor_b32 v11, 64, v10
    v_add_u32 v11, 7168, v11
    v_and_b32 v4, 1, v4
    v_mul_u32_u24 v6, 3072, v2
    v_lshlrev_b32 v7, 2, v4
    v_xor_b32 v7, v3, v7
    v_lshl_add_u32 v12, v7, 4, v6
    s_lshl_b32 s25, s22, 16
    s_lshl_b32 s26, s20, 14
    s_add_u32 s25, s25, s26
    s_mul_i32 s26, s20, 49152
    s_lshl_b32 s27, s21, 7
    s_add_u32 s26, s26, s27
    s_lshl_b32 s27, s20, 11
    s_lshl_b32 s28, s20, 12
    s_mov_b32 s24, 0
    s_mov_b32 s6, 0x200000
    s_mov_b32 s7, 0x20000
    s_mov_b32 s18, 0x180000
    s_mov_b32 s19, 0x20000
    {"s_memtime s[74:75]" if OPT.get("est") else ""}
    s_waitcnt lgkmcnt(0)
    {"s_memtime s[76:77]" if OPT.get("est") else ""}
    s_mov_b64 s[4:5], s[{P_X}:{P_X+1}]
    s_mov_b64 s[16:17], s[{P_WQKV}:{P_WQKV+1}]
    {"s_mov_b64 s[98:99], s[38:39]" if OPT.get("spf") else ""}
    s_cmp_ge_u32 s20, 4
    s_cbranch_scc1 L_notprod
    """)
    e.c("chunk s24: x -> X tile, Wk|Wv -> ring slot s24 & 3")
    e.label("L_pi")
    e(f"""
    s_add_u32 s30, s23, s24
    s_and_b32 s30, s30, 7
    s_lshl_b32 s31, s30, 7
    s_add_u32 s31, s31, s25
    s_mul_i32 s32, s30, 196608
    s_mov_b32 m0, s27
    s_add_u32 s32, s32, s26
    buffer_load_dwordx4 v10, s[4:7], s31 offen lds
    buffer_load_dwordx4 v11, s[4:7], s31 offen offset:1024 lds
    s_add_u32 s33, s32, {1024 + 24576 - 2048}
    s_add_u32 m0, s28, {L_W}
    s_add_u32 s32, s32, 1024
    buffer_load_dwordx4 v12, s[16:19], s32 offen lds
    buffer_load_dwordx4 v12, s[16:19], s32 offen offset:1024 lds
    buffer_load_dwordx4 v12, s[16:19], s33 offen offset:2048 lds
    buffer_load_dwordx4 v12, s[16:19], s33 offen offset:3072 lds
    s_add_u32 s27, s27, 8192
    s_add_u32 s28, s28, 16384
    s_and_b32 s28, s28, 0xffff
    s_add_u32 s24, s24, 1
    s_and_b32 s30, s24, 5
    s_cmp_eq_u32 s30, 1
    s_cbranch_scc1 L_pi
    s_cmp_lg_u32 s24, 2
    s_cbranch_scc1 L_pb
    s_waitcnt vmcnt(6)
    """)
    stamp(e, 1)
    e.label("L_pb")
    e("s_waitcnt vmcnt(12)")
    e("s_barrier")
    if OPT.get("spf"):
        NH = int(OPT["spf"])
        e("s_cmp_gt_u32 s24, 6\ns_cbranch_scc1 L_nspf")
        for r in range(4):
            for h in range(NH): e(f"s_load_dword s{100 + (r & 1)}, s[98:99], {r*3072 + h*64}")
        e("s_add_u32 s98, s98, 12288\ns_addc_u32 s99, s99, 0")
        e.label("L_nspf")
    e("""
    s_cmp_lt_u32 s24, 8
    s_cbranch_scc1 L_pi
    """)
    e.c("Wq chunk s24 - 8 (s27 has walked to the W ring)")
    e.label("L_pq")
    e(f"""
    s_add_u32 s30, s23, s24
    s_and_b32 s30, s30, 7
    s_mul_i32 s32, s30, 196608
    s_add_u32 s32, s32, s26
    s_mov_b32 m0, s27
    s_add_u32 s33, s32, {24576 - 1024}
    buffer_load_dwordx4 v12, s[16:19], s32 offen lds
    buffer_load_dwordx4 v12, s[16:19], s33 offen offset:1024 lds
    s_add_u32 s27, s27, 8192
    s_add_u32 s24, s24, 1
    s_cmp_eq_u32 s24, 10
    s_cbranch_scc0 L_pq1
    s_waitcnt vmcnt(10)
    s_barrier
    """)
    e.label("L_pq1")
    e("""
    s_cmp_eq_u32 s24, 12
    s_cbranch_scc0 L_pq2
    s_waitcnt vmcnt(8)
    s_barrier
    """)
    e.label("L_pq2")
    e("""
    s_cmp_eq_u32 s24, 14
    s_cbranch_scc0 L_pq3
    s_waitcnt vmcnt(4)
    """)
    stamp(e, 2)
    e("s_barrier")
    e.label("L_pq3")
    e("""
    s_cmp_lt_u32 s24, 16
    s_cbranch_scc1 L_pq
    s_waitcnt vmcnt(4)
    """)
    stamp(e, 3)
    e("""
    s_barrier
    s_barrier
    s_waitcnt vmcnt(0)
    """)
    stamp(e, 4)
    e("s_barrier")
    stamp(e, 5)
    e("s_branch L_setup")
    e.label("L_notprod")
    e("""
    s_cmp_eq_u32 s20, 8
    s_cbranch_scc1 L_help
    """)
    e.label("L_setup")
    if OPT.get("est"): stamp(e, 4)
    srd(e, 12, P_WS, WS_SIZE)
    if OPT.get("spf"):
        e(f"""
        s_and_b32 s30, s23, 7
        s_mul_i32 s30, s30, 196608
        s_and_b32 s31, s20, 3
        s_mul_i32 s31, s31, 49152
        s_add_u32 s30, s30, s31
        s_lshl_b32 s31, s21, 7
        s_add_u32 s30, s30, s31
        s_add_u32 s98, s{P_WQKV}, s30
        s_addc_u32 s99, s{P_WQKV+1}, 0
        """)
    attn_setup(e)
    if OPT.get("est"): stamp(e, 5)
    e("""
    s_mov_b64 vcc, 0
    s_cmp_ge_u32 s20, 4
    s_cbranch_scc1 L_comp
    """)
    e(f"""
    buffer_load_dwordx4 {vr(XR,4)}, v{A_OUT}, s[4:7], s64 offen
    buffer_load_dwordx4 {vr(XR+4,4)}, v{A_OUT}, s[4:7], s64 offen offset:16
    s_branch L_b10
    """)

def compute(e):
    e.label("L_comp")
    AK, AV, AQ, F = 16, 32, 48, 64
    e("""
    s_and_b32 s24, s20, 1
    s_and_b32 s25, s20, 2
    v_and_b32 v2, 31, v1
    v_lshrrev_b32 v3, 5, v1
    v_lshlrev_b32 v4, 7, v2
    s_lshl_b32 s26, s24, 12
    v_add_u32 v4, s26, v4
    v_bfe_u32 v5, v2, 1, 3
    v_xor_b32 v5, v5, v3
    """)
    for ks in range(4):
        e(f"v_xor_b32 v6, {2*ks}, v5\nv_lshl_add_u32 v{8+ks}, v6, 4, v4")
    e(f"""
    v_bfe_u32 v4, v1, 4, 1
    v_bfe_u32 v5, v1, 2, 2
    v_and_b32 v6, 3, v1
    v_bfe_u32 v7, v1, 3, 1
    v_lshlrev_b32 v7, 1, v7
    v_xor_b32 v7, v7, v4
    v_xor_b32 v7, s25, v7
    v_lshlrev_b32 v7, 5, v7
    v_lshl_add_u32 v7, v5, 7, v7
    v_lshl_add_u32 v7, v6, 3, v7
    v_add_u32 v7, {L_W}, v7
    v_lshl_add_u32 v12, v3, 11, v7
    v_lshl_add_u32 v13, v3, 10, v7
    s_lshl_b32 s26, s25, 11
    s_lshl_b32 s27, s24, 10
    s_add_u32 s26, s26, s27
    s_add_u32 s26, s26, {L_QX}
    v_add_u32 v14, s26, v15
    s_lshl_b32 s26, s21, 2
    s_add_u32 s26, s26, s25
    s_mul_i32 s26, s26, {HS}
    s_lshl_b32 s27, s22, 1
    s_add_u32 s27, s27, s24
    s_lshl_b32 s27, s27, 11
    s_add_u32 s26, s26, s27
    s_add_u32 s27, s26, {HS}
    s_lshl_b32 s28, s24, 2
    s_add_u32 s28, s28, s25
    s_mul_i32 s28, s28, {SLOT}
    s_add_u32 s28, s28, {L_R}
    v_and_b32 v7, 15, v1
    v_lshlrev_b32 v7, 4, v7
    v_lshl_add_u32 v7, v3, 8, v7
    v_mul_u32_u24 v5, {SLOT}, v4
    v_add3_u32 v5, v5, v7, s28
    v_mul_u32_u24 v2, {HS}, v4
    v_add_u32 v7, v7, v2
    v_add_u32 v2, s28, v15
    s_mov_b32 s30, {QSCALE:#x}
    s_mov_b32 s31, {QSCALE:#x}
    s_mov_b32 s29, 0x1ffff
    v_mov_b32 v6, {L_W}
    """)
    for r in range(F + 24, F + 48): e(f"v_mov_b32 v{r}, 0")
    e("s_mov_b32 s24, 8\ns_nop 0")
    for D in (AK, AV, AQ): e(f"v_mfma_f32_32x32x16_bf16 {vr(D,16)}, {vr(F+24,4)}, {vr(F+24,4)}, 0")
    if not not OPT.get("touch"):
        e("s_mov_b64 vcc, 1")
        for k in range(3): e(f"s_cmp_eq_u32 s20, {4+k}\ns_cbranch_scc1 L_tc_s{k}")
        e("s_branch L_tc_s3")
        e.label("L_tc_ret")
        e("s_mov_b64 vcc, 0")
    def rd(ks):
        f = F + 12 * ks; o = ks * 4096
        e(f"ds_read_b128 {vr(f,4)}, v{8+ks}")
        e(f"ds_read_b64_tr_b16 {vr(f+4,2)}, v12 offset:{o}")
        e(f"ds_read_b64_tr_b16 {vr(f+6,2)}, v12 offset:{o+512}")
        e(f"ds_read_b64_tr_b16 {vr(f+8,2)}, v12 offset:{o+1024}")
        e(f"ds_read_b64_tr_b16 {vr(f+10,2)}, v12 offset:{o+1536}")
    def mf(ks):
        f = F + 12 * ks
        e(f"v_mfma_f32_32x32x16_bf16 {vr(AK,16)}, {vr(f+4,4)}, {vr(f,4)}, {vr(AK,16)}")
        e(f"v_mfma_f32_32x32x16_bf16 {vr(AV,16)}, {vr(f,4)}, {vr(f+8,4)}, {vr(AV,16)}")
    e(";@tc[")
    e.label("L_cl")
    e("s_waitcnt lgkmcnt(0)")
    e("s_barrier")
    stamp(e, 2)
    rd(0); rd(1); mf(2); rd(2); mf(3)
    e("s_waitcnt lgkmcnt(10)")
    rd(3); mf(0)
    for ks in range(4): e(f"v_add_u32 v{8+ks}, 8192, v{8+ks}")
    e("v_add_u32 v12, 16384, v12\nv_and_or_b32 v12, v12, s29, v6")
    e("s_sub_u32 s24, s24, 1")
    e("s_waitcnt lgkmcnt(10)")
    mf(1)
    e("s_cmp_lg_u32 s24, 0\ns_cbranch_scc1 L_cl")
    e("s_waitcnt lgkmcnt(5)")
    mf(2)
    e("s_waitcnt lgkmcnt(0)")
    mf(3)
    for ks in range(4): e(f"v_subrev_u32 v{8+ks}, 0x10000, v{8+ks}")
    e("s_nop 6")
    e.c("K/V epilogue: publish (write-through) and stage own tiles in ring slot 0")
    T = F
    for j in range(8): e(f"v_cvt_pk_bf16_f32 v{T+j}, v{AK+2*j}, v{AK+2*j+1}")
    e(f"buffer_store_dwordx4 {vr(T,4)}, v15, s[12:15], s26 offen sc1")
    e(f"buffer_store_dwordx4 {vr(T+4,4)}, v15, s[12:15], s27 offen sc1")
    for j in range(8): e(f"v_cvt_pk_bf16_f32 v{T+8+j}, v{AV+2*j}, v{AV+2*j+1}")
    e(f"buffer_store_dwordx4 {vr(T+8,4)}, v7, s[12:15], s26 offen offset:1024 sc1")
    e(f"buffer_store_dwordx4 {vr(T+12,4)}, v7, s[12:15], s26 offen offset:1536 sc1")
    stamp(e, 3)
    e(f"ds_write_b128 v2, {vr(T,4)}")
    e(f"ds_write_b128 v2, {vr(T+4,4)} offset:{SLOT}")
    e(f"ds_write_b128 v5, {vr(T+8,4)} offset:1024")
    e(f"ds_write_b128 v5, {vr(T+12,4)} offset:1536")
    e.c("Q projection, two halves of 16 k-steps")
    FQ = F + 16
    def rdq(cc, ks):
        f = FQ + 8 * ks; o = cc * 8192 + ks * 2048
        e(f"ds_read_b128 {vr(f,4)}, v{8+ks} offset:{cc*8192}")
        e(f"ds_read_b64_tr_b16 {vr(f+4,2)}, v13 offset:{o}")
        e(f"ds_read_b64_tr_b16 {vr(f+6,2)}, v13 offset:{o+512}")
    def mfq(ks):
        f = FQ + 8 * ks
        e(f"v_mfma_f32_32x32x16_bf16 {vr(AQ,16)}, {vr(f+4,4)}, {vr(f,4)}, {vr(AQ,16)}")
    e("s_waitcnt lgkmcnt(0)")
    for (c0, c1) in ((0, 4), (4, 6), (6, 8)):
        e("s_barrier")
        for ks in range(4): rdq(c0, ks)
        for cc in range(c0, c1):
            for ks in range(4):
                e(f"s_waitcnt lgkmcnt({9 if cc < c1 - 1 else 3*(3-ks)})")
                mfq(ks)
                if cc < c1 - 1: rdq(cc + 1, ks)
        if c0 == 4:
            e("s_waitcnt vmcnt(0)")
            stamp(e, 4)
            e("s_barrier")
    e("s_nop 1")
    e("s_nop 9")
    for j in range(8): e(f"v_pk_mul_f32 {vr(AQ+2*j,2)}, {vr(AQ+2*j,2)}, s[30:31]")
    for j in range(8): e(f"v_cvt_pk_bf16_f32 v{AK+j}, v{AQ+2*j}, v{AQ+2*j+1}")
    e(f"ds_write_b128 v14, {vr(AK,4)}")
    e(f"ds_write_b128 v14, {vr(AK+4,4)} offset:2048")
    stamp(e, 5)

SCHEDS = {
 "c1": ("e2 S0p e3 S1 e3 M e3 wv rk e1 r0 e1 r1 e1 pr e2", "e2 S0p e3 S1 e3 wl M e3 m0 xc xs e1 dk e1 dv e1 sa sn lc lt e2"),
 "c3": ("e2 S0p e3 S1 e3 M e3 wv rk e1 r0 e1 r1 e1 pr e2", "e2 S0p m0 xc xs e3 S1 e3 wl M e3 dk e1 dv e1 sa sn lc lt e3"),
 "c4": ("e2 S0p e3 S1 e3 M e4 wv rk r0 r1 e2 pr e2", "e2 S0p e3 S1 e3 wl M e4 m0 xc xs dk dv e2 sa sn lc lt e2"),
 "c5": ("e2 S0p e3 S1 e3 M e3 wv rk e1 r0 e1 r1 e1 m0 xc xs e2", "e2 S0p e3 S1 e3 wl M e3 dk e1 dv e1 sa sn e1 pr lc lt e2"),
 "c6": ("e2 S0p e4 S1 e2 M e3 wv rk e1 r0 e1 r1 e1 pr e2", "e2 S0p e4 S1 e2 wl M e3 m0 xc xs e1 dk e1 dv e1 sa sn lc lt e2"),
 "c7": ("S0p e3 S1 e3 M e3 wv rk e1 r0 e1 r1 e1 pr e4", "S0p e3 S1 e3 wl M e3 m0 xc xs e1 dk e1 dv e1 sa sn lc lt e4"),
 "k1": ("S0p e3 S1 e3 M e3 dk e1 wv r0 e1 r1 e1 pr e4", "S0p e3 S1 e3 M e3 m0 xc xs e1 wl dv e2 sa sn lc lt e4"),
 "k2": ("S0p e3 S1 e3 M e3 dk e1 wv r0 e1 r1 e1 pr e4", "S0p e3 S1 e3 M e3 m0 xc xs wl dv e1 sa sn lc lt e6"),
 "kp": ("e2 S0p e3 S1 e3 M e3 X wv r0 e1 r1 e2 F pr e2", "e2 S0p e3 S1 e3 M e3 m0 xc xs e1 dk2 e1 wl dv e1 sa sn lc lt e2"),
 "v1": ("S0p e3 S1 e3 M e3 vl e3 pr e4", "wv S0p e3 S1 e3 M e3 a0 a1 a2 a3 e1 kl e2 lc lt e4"),
 "v2": ("S0p e3 S1 e3 M e4 vl e2 pr e4", "wv S0p e3 S1 e3 M e4 a0 a1 a2 a3 kl e2 lc lt e4"),
 "v3": ("S0p e3 S1 e3 M e3 vl e3 a0 a1 a2 a3 pr e4", "wv S0p e3 S1 e3 M e3 kl e3 lc lt e4"),
 "w1": ("S0p e3 S1 e3 M e4 vl a0 a1 a2 a3 kl e2 F e4", "wv10 S0p e3 S1 e3 wv9 M e6 pr lc lt e4"),
 "w2": ("S0p e3 S1 e3 M e3 vl e1 a0 a1 a2 a3 kl e2 F e4", "wv9 S0p e3 S1 e3 M e6 pr lc lt e4"),
 "w3": ("S0p e3 S1 vl e3 M e3 a0 a1 a2 a3 kl e3 F e4", "wv9 S0p e3 S1 e3 M e6 pr lc lt e4"),
 "v4": ("S0p e3 S1 e1 vl e2 M e4 a0 a1 a2 a3 e2 pr e3 kl e1", "wv10 S0p e3 S1 e3 wv9 M e6 nop lc lt e4"),
 "v5": ("S0p e3 S1 e3 M e4 vl e2 pr e4", "wv9 S0p e3 S1 e3 wv M e4 a0 a1 a2 a3 kl e2 lc lt e4"),
 "v6": ("S0p e3 S1 e3 M e3 vl e3 pr e4", "wv9 S0p e3 S1 e3 wv M e3 a0 a1 a2 a3 kl e3 lc lt e4"),
 "v7": ("S0p e3 S1 e3 M e2 vl e4 pr e4", "wv9 S0p e3 S1 e3 wv M e2 a0 a1 a2 a3 kl e4 lc lt e4"),
 "v8": ("e2 S0p e3 S1 e3 M e3 vl e2 pr e3", "e2 wv9 S0p e3 S1 e3 wv M e3 a0 a1 a2 a3 kl e2 lc lt e3"),
 "v9": ("S0p e3 S1 e3 M e4 vl e2 a0 a1 a2 a3 pr e4", "wv9 S0p e3 S1 e3 wv M e4 kl e2 lc lt e4"),
 "va": ("S0p e3 S1 e3 M e4 vl e6", "wv9 S0p e3 S1 e3 wv M e4 a0 a1 a2 a3 kl e2 pr lc lt e4"),
 "vb": ("S0p e3 S1 e3 M e4 vl e2 pr e4", "wv9 S0p e3 S1 e3 wv M a0 a1 a2 a3 e4 kl e2 lc lt e4"),
 "c8": ("S0p e3 S1 e3 M e5 wv rk e1 r0 e1 r1 e1 pr e2", "S0p e3 S1 e3 wl M e5 m0 xc xs e1 dk e1 dv e1 sa sn lc lt e2"),
 "c9": ("S0p e4 S1 e4 M e3 wv rk e1 r0 e1 r1 e1 pr e2", "S0p e4 S1 e4 wl M e3 m0 xc xs e1 dk e1 dv e1 sa sn lc lt e2"),
}
A_K, A_V0, A_V1, A_IDX, A_VG, A_KG, A_ONE, A_QX, A_MR, A_ML, A_MW, A_OUT, A_WO, A_O, A_ROW = range(144, 159)
XR = 160
def attn_setup(e):
    e(f"""
    s_and_b32 s40, s20, 3
    s_lshr_b32 s41, s20, 2
    s_lshl_b32 s42, s21, 2
    s_add_u32 s42, s42, s40
    s_mul_i32 s43, s42, {HS}
    s_lshl_b32 s44, s41, 11
    s_add_u32 s43, s43, s44
    s_add_u32 s8, s{P_WS}, s43
    s_addc_u32 s9, s{P_WS+1}, 0
    s_mov_b32 s10, 0x20000
    s_mov_b32 s11, 0x20000
    s_mul_i32 s48, s20, {SLOT}
    s_add_u32 s48, s48, {L_R}
    s_lshl_b32 s44, s40, 11
    s_lshl_b32 s46, s41, 10
    s_add_u32 s44, s44, s46
    s_add_u32 s44, s44, {L_QX}
    v_add_u32 v{A_QX}, s44, v15
    v_and_b32 v2, 0x33, v1
    v_bfe_u32 v3, v1, 2, 1
    v_lshl_or_b32 v2, v3, 3, v2
    v_bfe_u32 v3, v1, 3, 1
    v_lshl_or_b32 v2, v3, 2, v2
    v_lshlrev_b32 v{A_KG}, 4, v2
    v_add_u32 v{A_K}, s48, v{A_KG}
    v_and_b32 v2, 15, v1
    v_lshrrev_b32 v3, 5, v1
    v_lshl_add_u32 v2, v3, 4, v2
    v_lshlrev_b32 v{A_VG}, 4, v2
    v_add_u32 v{A_V0}, s48, v{A_VG}
    v_and_b32 v5, 27, v1
    v_cmp_eq_u32 vcc, 16, v5
    v_mov_b32 v{A_IDX}, 0xdddddddd
    v_mov_b32 v5, 0x3f803f80
    s_mov_b32 s52, 0xffff
    s_mov_b32 s53, 0xffff
    v_cndmask_b32 v112, 0, v5, vcc
    """)
    for r in range(113, 144): e(f"v_mov_b32 v{r}, v112")
    e(f"""
    s_lshl_b32 s49, 1, s22
    s_mov_b32 s50, {int(OPT.get('iters', 8))}
    s_xor_b32 s46, s20, 4
    s_mul_i32 s46, s46, {SLOT}
    s_add_u32 s46, s46, {L_R}
    v_add_u32 v{A_MR}, s46, v{A_KG}
    v_lshlrev_b32 v4, 2, v1
    v_add_u32 v{A_ML}, s46, v4
    v_add_u32 v{A_MW}, s48, v4
    s_lshl_b32 s45, s22, 16
    s_lshl_b32 s51, s42, 10
    s_add_u32 s51, s51, s45
    s_lshl_b32 s47, s41, 15
    s_add_u32 s51, s51, s47
    s_add_u32 s51, s51, {WS_OF:#x}
    s_and_b32 s40, s20, 1
    s_bfe_u32 s41, s20, 0x10001
    s_lshl_b32 s45, s68, 16
    v_and_b32 v2, 31, v1
    s_lshl_b32 s43, s40, 5
    v_add_u32 v{A_ROW}, s43, v2
    v_lshlrev_b32 v2, 10, v{A_ROW}
    v_lshl_add_u32 v{A_OUT}, v3, 5, v2
    s_lshl_b32 s64, s41, 6
    s_lshl_b32 s44, s69, 7
    s_add_u32 s64, s64, s44
    s_add_u32 s64, s64, s45
    v_bfe_u32 v4, v1, 4, 1
    v_bfe_u32 v5, v1, 2, 2
    v_and_b32 v6, 1, v1
    v_bfe_u32 v7, v1, 3, 1
    v_xor_b32 v7, s41, v7
    v_lshlrev_b32 v2, 6, v7
    v_lshl_add_u32 v2, v6, 5, v2
    v_lshl_add_u32 v2, v4, 4, v2
    v_bfe_u32 v7, v1, 1, 1
    v_lshl_add_u32 v2, v7, 3, v2
    v_lshl_add_u32 v2, v5, 7, v2
    v_lshl_add_u32 v{A_WO}, v3, 9, v2
    s_lshl_b32 s44, s40, 10
    s_add_u32 s44, s44, {L_W}
    v_add_u32 v{A_O}, s44, v15
    s_lshl_b32 s65, s41, 7
    s_and_b32 s44, s20, 3
    s_lshl_b32 s66, s44, 10
    s_add_u32 s66, s66, s45
    s_add_u32 s66, s66, {WS_OF:#x}
    s_lshl_b32 s67, s44, 11
    s_add_u32 s67, s67, {L_W}
    """)

def attention(e):
    SCHED = SCHEDS[OPT.get("sched", "v5")]
    SA, SB, OA, OB = 16, 32, 48, 64
    QA, QB = 80, 84
    KR = (88, 92, 96, 100); VR = (112, 120, 128, 136); ZR = 104
    K = (KR[0],); V0 = (VR[0],); V1 = (VR[0] + 4,)
    def ex(S, a, b):
        for i in range(a, b): e(f"v_exp_f32 v{S+i}, v{S+i}")
    def smf(O, V, S):
        e(f"v_smfmac_f32_32x32x32_bf16 {vr(O,16)}, {vr(V,4)}, {vr(S,8)}, v{A_IDX}")
    ADV = ["s_add_u32 s96, s96, 1" if OPT.get('iters') else "s_ff1_i32_b64 s96, s[94:95]", "s_bitset0_b64 s[94:95], s96",
           "s_lshl_b32 s97, s96, 12", f"s_and_b32 s97, s97, {0x1f000 if OPT.get('iters') else 0x8001f000:#x}"]
    def kl(s): return f"buffer_load_dwordx4 {vr(KR[s],4)}, v{A_KG}, s[8:11], s97 offen sc1"
    def vl(s): return "\n".join(["s_mov_b64 exec, s[52:53]",
                                 f"buffer_load_dwordx4 {vr(VR[s],4)}, v{A_VG}, s[8:11], s97 offen offset:1024 sc1",
                                 f"buffer_load_dwordx4 {vr(VR[s]+4,4)}, v{A_VG}, s[8:11], s97 offen offset:1536 sc1",
                                 "s_mov_b64 exec, -1"])
    def tile(i, sched, x=None, last=False, fl=None):
        T = {
          "pr": f"s_setprio {3-i}", "wv": "s_waitcnt vmcnt(8)", "wv9": "s_waitcnt vmcnt(9)", "wv10": "s_waitcnt vmcnt(10)",
          "vl": vl((i + 3) % 4), "kl": kl(i % 4), "a0": ADV[0], "a1": ADV[1], "a2": ADV[2], "a3": ADV[3],
          "F": fl, "X": x, "nop": "s_nop 0",
          "lc": "s_sub_u32 s50, s50, 1" if last else None,
          "lt": "s_cmp_lg_u32 s50, 0" if last else None,
        }
        for (seq, S, So, Oo, Kn, Qo, V) in ((sched[0], SA, SB, OB, KR[i % 4], QB, VR[(i + 3) % 4]),
                                            (sched[1], SB, SA, OA, KR[(i + 1) % 4], QA, VR[i % 4])):
            n = 0
            for t in seq.split():
                if t[0] == "e" and t[1:].isdigit(): ex(S, n, n + int(t[1:])); n += int(t[1:])
                elif t == "S1": smf(Oo, V + 4, So + 8)
                elif t == "S0p": smf(Oo, V, So)
                elif t == "M": e(f"v_mfma_f32_32x32x16_bf16 {vr(So,16)}, {vr(Kn,4)}, {vr(Qo,4)}, 0")
                elif T[t] is not None: e(T[t])
            assert n == 16
    e.label("L_b10")
    e(f"""
    ds_read_b128 {vr(KR[0],4)}, v{A_K}
    s_mov_b64 exec, s[52:53]
    ds_read_b128 {vr(VR[0],4)}, v{A_V0} offset:1024
    ds_read_b128 {vr(VR[0]+4,4)}, v{A_V0} offset:1536
    s_mov_b64 exec, -1
    """)
    for r in range(ZR, ZR + 4): e(f"v_mov_b32 v{r}, 0")
    e(f"v_xor_b32 v3, 1024, v{A_QX}")
    e(f"v_mov_b32 v8, {L_RM}")
    for D in (OA, OB): e(f"v_mfma_f32_32x32x16_bf16 {vr(D,16)}, {vr(ZR,4)}, {vr(ZR,4)}, 0")
    e("s_setprio 3")
    e("s_waitcnt lgkmcnt(0)")
    e("s_barrier")
    stamp(e, 6)
    e(f"""
    ds_read_b32 v9, v8
    ds_read_b128 {vr(QA,4)}, v3
    ds_read_b128 {vr(QB,4)}, v{A_QX}
    s_waitcnt lgkmcnt(2)
    v_readfirstlane_b32 s94, v9
    s_waitcnt lgkmcnt(1)
    v_mfma_f32_32x32x16_bf16 {vr(SA,16)}, {vr(KR[0],4)}, {vr(QA,4)}, 0
    s_not_b32 s95, s94
    s_andn2_b32 s94, s94, s49
    s_mov_b32 s96, 0
    s_waitcnt lgkmcnt(0)
    v_mfma_f32_32x32x16_bf16 {vr(SB,16)}, {vr(KR[0],4)}, {vr(QB,4)}, 0
    """)
    for t in ADV + [kl(1), vl(1)]: e(t)
    if OPT.get("pst"): stamp(e, 1)
    e.c("own key tile (peeled): nothing here waits for remote data; the register rings are filled gradually")
    ex(SA, 0, 16)
    for t in ADV + [kl(2), vl(2)]: e(t)
    ex(SB, 0, 2); smf(OA, VR[0], SA); ex(SB, 2, 6); smf(OA, VR[0] + 4, SA + 8); ex(SB, 6, 10)
    if OPT.get("pst"): stamp(e, 2)
    e("s_waitcnt vmcnt(5)")
    if OPT.get("pst"): stamp(e, 3)
    e(f"v_mfma_f32_32x32x16_bf16 {vr(SA,16)}, {vr(KR[1],4)}, {vr(QA,4)}, 0")
    ex(SB, 10, 16)
    for t in ADV + [kl(3)]: e(t)
    e("s_setprio 2")
    if OPT.get("pst"): stamp(e, 4)
    NPL = int(OPT.get("npeel", 3))
    PS = (SCHED[0].replace(" vl ", " X vl F "), SCHED[1])
    tile(1, PS, x="\n".join([vl(3)] + ADV + [kl(0)]), fl="ds_read_b32 v9, v8" if NPL == 2 else None)
    if NPL == 3: tile(2, PS, fl="ds_read_b32 v9, v8")
    if OPT.get("pst"): stamp(e, 5)
    e.c("from here on chunks that were not ready at the start may be fetched: every chunk must have been published")
    e("s_waitcnt lgkmcnt(0)")
    e.label("L_full")
    e("""
    v_readfirstlane_b32 s30, v9
    s_cmp_eq_u32 s30, -1
    s_cbranch_scc1 L_loopin
    ds_read_b32 v9, v8
    s_sleep 2
    s_waitcnt lgkmcnt(0)
    s_branch L_full
    """)
    e(".p2align 6")
    e.label("L_loop")
    for i in range(4):
        if i == NPL: e.label("L_loopin")
        tile(i, SCHED, last=(i == 3))
    e("s_cbranch_scc1 L_loop")
    e("s_setprio 0")
    smf(OB, VR[3], SB)
    smf(OB, VR[3] + 4, SB + 8)
    stamp(e, 7)
    e.c("merge the two key halves: hand tile A to the partner wave, finalise tile B")
    e(f"""
    ds_write_b32 v{A_MW}, v{OA+8} offset:2048
    ds_write_b128 v{A_K}, {vr(OA,4)}
    ds_write_b128 v{A_K}, {vr(OA+4,4)} offset:1024
    s_waitcnt lgkmcnt(0)
    s_barrier
    """)
    tstamp(e, 1)
    e(f"""
    ds_read_b32 v{SA+8}, v{A_ML} offset:2048
    ds_read_b128 {vr(SA,4)}, v{A_MR}
    ds_read_b128 {vr(SA+4,4)}, v{A_MR} offset:1024
    s_nop 3
    s_waitcnt lgkmcnt(2)
    v_add_f32 v{OB+8}, v{OB+8}, v{SA+8}
    v_rcp_f32 v2, v{OB+8}
    s_waitcnt vmcnt(0) lgkmcnt(0)
    """)
    for j in range(4): e(f"v_pk_add_f32 {vr(OB+2*j,2)}, {vr(OB+2*j,2)}, {vr(SA+2*j,2)}")
    e.label("L_fin")
    for j in range(4): e(f"v_pk_mul_f32 {vr(SA+2*j,2)}, {vr(OB+2*j,2)}, v[2:3] op_sel_hi:[1,0]")
    for j in range(4): e(f"v_cvt_pk_bf16_f32 v{4+j}, v{SA+2*j}, v{SA+2*j+1}")
    e("buffer_store_dwordx4 v[4:7], v15, s[12:15], s51 offen sc1")
    tstamp(e, 2)
    e.c("softmax guard: the fast path used a zero shift; it is exact only while the row sum is well inside the")
    e.c("fp32/bf16 range and nothing overflowed.  Otherwise redo this tile with the true row maximum and store again")
    e.c("(nothing is published before the barrier below).  s50 = 0 on the first visit, 1 after the fallback.")
    e(f"v_mul_f32 v2, 0, v{OB}")
    for j in range(1, 8): e(f"v_fmac_f32 v2, 0, v{OB+j}")
    e(f"""
    v_add_f32 v2, v2, v{OB+8}
    v_cmp_nle_f32 vcc, 0x33800000, v2
    v_mov_b32 v3, 0x57800000
    v_cmp_nle_f32 s[30:31], v2, v3
    s_or_b64 vcc, vcc, s[30:31]
    s_cbranch_vccz L_ok
    s_cmp_eq_u32 s50, 0
    s_cbranch_scc1 L_fallback
    """)
    e.label("L_ok")
    e.c("phase 3.  Producers (4 heads each) are taken in the order: those already published at B12b, then the rest")
    e(f"""
    v_mov_b32 v8, {L_RM + 4}
    s_cmp_lt_u32 s20, 4
    s_cbranch_scc1 L_p3
    s_waitcnt vmcnt(0)
    s_barrier
    s_barrier
    ds_read_b32 v9, v8
    s_waitcnt lgkmcnt(0)
    v_readfirstlane_b32 s94, v9
    s_nop 1
    s_xor_b32 s95, s94, 0xff
    """)
    def ldloop(name, reg):
        e(f"""
        s_cmp_eq_u32 s{reg}, 0
        s_cbranch_scc1 L_{name}_x
        """)
        e.label(f"L_{name}")
        e(f"""
        s_ff1_i32_b32 s30, s{reg}
        s_bitset0_b32 s{reg}, s30
        s_lshl_b32 s31, s30, 13
        s_add_u32 m0, s31, s67
        s_lshl_b32 s30, s30, 12
        s_add_u32 s30, s30, s66
        s_add_u32 s31, s30, {32768 - 1024}
        buffer_load_dwordx4 v15, s[12:15], s30 offen sc1 lds
        buffer_load_dwordx4 v15, s[12:15], s31 offen offset:1024 sc1 lds
        s_cmp_lg_u32 s{reg}, 0
        s_cbranch_scc1 L_{name}
        """)
        e.label(f"L_{name}_x")
    ldloop("ol1", 94)
    e("s_barrier")
    stamp(e, 8)
    ldloop("ol2", 95)
    BS = [int(c) for c in OPT.get("bs", "0246")]
    for i, k in enumerate(BS):
        nxt = BS[i + 1] if i + 1 < len(BS) else 8
        e(f"s_waitcnt vmcnt({16 - 2*nxt})\ns_barrier")
    stamp_out(e)
    e("s_endpgm")
    e.label("L_p3")
    WF, CB, OF, ACC, NP = 32, 112, 128, 16, 5
    e(f"""
    s_lshl_b32 s29, s68, 8
    s_add_u32 s29, s29, {WS_G:#x}
    v_lshlrev_b32 v14, 2, v{A_ROW}
    buffer_load_dword v10, v14, s[12:15], s29 offen sc1
    v_mov_b32 v12, {L_MS}
    ds_read_b64 v[96:97], v12
    v_lshrrev_b32 v3, 5, v1
    v_lshl_add_u32 v12, v3, 6, v12
    v_add_u32 v12, s65, v12
    s_lshl_b32 s29, s68, 6
    v_add_u32 v13, s29, v{A_ROW}
    v_not_b32 v13, v13
    """)
    for j in range(8):
        e(f"v_lshlrev_b32 v{CB+2*j}, 16, v{XR+j}")
        e(f"v_and_b32 v{CB+1+2*j}, 0xffff0000, v{XR+j}")
    srd(e, 16, P_OUT, 0x200000)
    e(f"""
    s_waitcnt lgkmcnt(0)
    v_cmp_eq_u32 vcc, v13, v96
    s_cbranch_vccz L_nomoe
    ds_read_b128 v[80:83], v12 offset:256
    ds_read_b128 v[84:87], v12 offset:272
    ds_read_b128 v[88:91], v12 offset:288
    ds_read_b128 v[92:95], v12 offset:304
    v_not_b32 v13, v97
    v_ashrrev_i32 v13, 31, v13
    v_or_b32 v13, 0x80000000, v13
    v_xor_b32 v13, v13, v97
    v_mul_f32 v13, {NLOG2E:#x}, v13
    v_exp_f32 v13, v13
    s_nop 0
    v_add_f32 v13, 1.0, v13
    v_rcp_f32 v13, v13
    s_and_saveexec_b64 s[30:31], vcc
    s_waitcnt lgkmcnt(0)
    """)
    for j in range(16): e(f"v_fmac_f32 v{CB+j}, v13, v{80+j}")
    e("s_mov_b64 exec, s[30:31]")
    e.label("L_nomoe")
    e("s_waitcnt vmcnt(0)\ns_barrier")
    tstamp(e, 3)
    for j in range(8): e(f"v_pk_fma_f32 {vr(CB+2*j,2)}, {vr(CB+2*j,2)}, v[10:11], {vr(CB+2*j,2)} op_sel_hi:[1,0,1] neg_lo:[0,1,0] neg_hi:[0,1,0]")
    e("""
    s_barrier
    ds_read_b32 v9, v8
    s_waitcnt lgkmcnt(0)
    v_readfirstlane_b32 s94, v9
    s_nop 1
    s_xor_b32 s95, s94, 0xff
    """)
    tstamp(e, 4)
    def rdw(k, h, a):
        f = WF + 16 * (k % NP) + 4 * h
        e(f"ds_read_b64_tr_b16 {vr(f,2)}, v{a} offset:{h*2048}")
        e(f"ds_read_b64_tr_b16 {vr(f+2,2)}, v{a} offset:{h*2048+1024}")
    for k in range(8):
        a = 8 if k < NP else 2 + k - NP
        e(f"""
        s_ff1_i32_b64 s30, s[94:95]
        s_bitset0_b64 s[94:95], s30
        s_and_b32 s30, s30, 7
        s_lshl_b32 s30, s30, 13
        v_add_u32 v{a}, s30, v{A_WO}
        v_add_u32 v{XR+k}, s30, v{A_O}
        """)
        if k < NP:
            if k: e("s_waitcnt lgkmcnt(6)")
            for h in range(4): rdw(k, h, a)
    e("s_barrier")
    stamp(e, 8)
    pend = []
    def need(tag):
        if tag in pend:
            n = len(pend) - 1 - pend.index(tag)
            e(f"s_waitcnt lgkmcnt({n})")
            del pend[:pend.index(tag) + 1]
    for k in range(9):
        if k in BS: e("s_barrier")
        if k == 0: e("s_waitcnt lgkmcnt(0)")
        if k == 8: tstamp(e, 5)
        for h in range(4):
            if k > 0:
                need(("w", k - 1, h)); need(("o", k - 1, h))
                e(f"v_mfma_f32_32x32x16_bf16 {vr(ACC,16)}, {vr(WF+16*((k-1)%NP)+4*h,4)}, {vr(OF+4*h,4)}, {'0' if (k == 1 and h == 0) else vr(ACC,16)}")
            if k < 8:
                e(f"ds_read_b128 {vr(OF+4*h,4)}, v{XR+k} offset:{h*2048}"); pend.append(("o", k, h))
            if 1 <= k <= 8 - NP:
                rdw(k - 1 + NP, h, 2 + k - 1); pend.append(("x", k, h)); pend.append(("w", k - 1 + NP, h))
    e.c("out = g*a + (1-g)*b,  b = x (+ sigmoid(r)*y on the routed row)")
    e("s_nop 11")
    for j in range(8): e(f"v_pk_fma_f32 {vr(CB+2*j,2)}, {vr(ACC+2*j,2)}, v[10:11], {vr(CB+2*j,2)} op_sel_hi:[1,0,1]")
    for j in range(8): e(f"v_cvt_pk_bf16_f32 v{ACC+j}, v{CB+2*j}, v{CB+1+2*j}")
    tstamp(e, 6)
    of = OPT.get("outf", "").replace("+", " ")
    e(f"buffer_store_dwordx4 {vr(ACC,4)}, v{A_OUT}, s[16:19], s64 offen {of}")
    e(f"buffer_store_dwordx4 {vr(ACC+4,4)}, v{A_OUT}, s[16:19], s64 offen offset:16 {of}")
    if OPT.get("g_glob"):
        srd(e, 8, P_DBG, 256)
        e("v_mov_b32 v3, 0\nbuffer_load_dword v2, v3, s[8:11], 0 offen sc1\ns_waitcnt vmcnt(0)\nv_readfirstlane_b32 s90, v2\ns_nop 3\ns_not_b32 s90, s90")
    gate(e, "g_end")
    stamp_out(e)
    e("s_endpgm")

    M = OA
    e.label("L_fallback")
    e(f"""
    s_lshr_b32 s30, s20, 2
    s_lshl_b32 s30, s30, 11
    s_sub_u32 s8, s8, s30
    s_subb_u32 s9, s9, 0
    s_mov_b32 s30, 0
    v_mov_b32 v2, 0xff800000
    """)
    e.label("L_fb1")
    e(f"""
    buffer_load_dwordx4 {vr(K[0],4)}, v{A_KG}, s[8:11], s30 offen sc1
    s_waitcnt vmcnt(0)
    v_mfma_f32_32x32x16_bf16 {vr(SA,16)}, {vr(K[0],4)}, {vr(QB,4)}, 0
    s_add_u32 s30, s30, 2048
    s_nop 11
    """)
    for j in range(8): e(f"v_max3_f32 v2, v2, v{SA+2*j}, v{SA+2*j+1}")
    e("""
    s_cmp_lt_u32 s30, 0x20000
    s_cbranch_scc1 L_fb1
    v_mov_b32 v3, v2
    s_nop 1
    v_permlane32_swap_b32 v2, v3
    s_nop 1
    v_max_f32 v2, v2, v3
    """)
    for j in range(16): e(f"v_sub_f32 v{M+j}, 0, v2")
    for j in range(16): e(f"v_mov_b32 v{OB+j}, 0")
    e("s_mov_b32 s30, 0")
    e.label("L_fb2")
    e(f"""
    buffer_load_dwordx4 {vr(K[0],4)}, v{A_KG}, s[8:11], s30 offen sc1
    s_mov_b64 exec, s[52:53]
    buffer_load_dwordx4 {vr(V0[0],4)}, v{A_VG}, s[8:11], s30 offen offset:1024 sc1
    buffer_load_dwordx4 {vr(V1[0],4)}, v{A_VG}, s[8:11], s30 offen offset:1536 sc1
    s_mov_b64 exec, -1
    s_waitcnt vmcnt(0)
    v_mfma_f32_32x32x16_bf16 {vr(SA,16)}, {vr(K[0],4)}, {vr(QB,4)}, {vr(M,16)}
    s_add_u32 s30, s30, 2048
    s_nop 11
    """)
    ex(SA, 0, 16)
    e("s_nop 1")
    smf(OB, V0[0], SA)
    smf(OB, V1[0], SA + 8)
    e("""
    s_cmp_lt_u32 s30, 0x20000
    s_cbranch_scc1 L_fb2
    s_nop 15
    s_mov_b32 s50, 1
    """)
    e(f"v_rcp_f32 v2, v{OB+8}\ns_nop 0\ns_branch L_fin")

def helper(e):
    e.label("L_help")
    common_srd(e)
    srd(e, 8, P_WR, 1024)
    srd(e, 16, P_GW, 1024)
    e(f"""
    s_lshl_b32 s24, s22, 3
    s_mov_b32 m0, {L_WV}
    s_add_u32 s24, s24, s21
    buffer_load_dwordx4 v15, s[8:11], 0 offen lds
    s_mov_b32 m0, {L_WV + 1024}
    s_nop 0
    buffer_load_dwordx4 v15, s[16:19], 0 offen lds
    """)
    if OPT.get("g_glob"):
        srd(e, 64, P_DBG, 256)
        e("s_not_b32 s30, s90\nv_mov_b32 v2, s30\nv_mov_b32 v3, 0\nv_mov_b32 v4, s90\ns_mov_b64 exec, 1\nbuffer_atomic_umax v2, v3, s[64:67], 0 offen\nbuffer_atomic_umax v4, v3, s[64:67], 0 offen offset:4\ns_mov_b64 exec, -1")
    epoch_load(e)
    e.c("address registers for later (computed while phase 1 waits for its first data)")
    e(f"""
    v_mov_b32 v56, 0
    v_lshlrev_b32 v61, 2, v1
    v_mul_u32_u24 v62, {CS}, v1
    v_lshrrev_b32 v2, 3, v1
    v_and_b32 v3, 7, v1
    v_lshlrev_b32 v4, 4, v3
    v_mul_u32_u24 v14, 2752, v2
    v_add_u32 v14, v14, v4
    v_lshl_add_u32 v58, v2, 10, v4
    v_bfe_u32 v4, v1, 4, 1
    v_lshlrev_b32 v4, 6, v4
    v_xor_b32 v59, v58, v4
    v_lshrrev_b32 v2, 4, v1
    v_bfe_u32 v3, v1, 2, 2
    v_and_b32 v4, 3, v1
    v_lshl_add_u32 v5, v2, 3, v3
    v_lshlrev_b32 v5, 7, v5
    v_lshl_add_u32 v5, v4, 3, v5
    v_add_u32 v60, {L_M}, v5
    v_lshlrev_b32 v2, 4, v2
    v_bfrev_b32 v4, 1
    """)
    for t in range(4):
        e(f"v_cmp_eq_u32 vcc, {t}, v3\ns_nop 1\nv_cndmask_b32 v{6+t}, v4, v2, vcc\nv_min_u32 v{10+t}, 128, v{6+t}\nv_add_u32 v{10+t}, {L_H}, v{10+t}")
    e(f"""
    v_add_u32 v160, {L_MS}, v61
    v_mov_b32 v161, {L_MS}
    v_lshlrev_b32 v162, 1, v1
    v_add_u32 v162, {L_H}, v162
    s_lshr_b32 s64, s2, 3
    s_and_b32 s65, s2, 7
    s_lshl_b32 s25, 1, s65
    s_lshl_b32 s26, 1, s64
    s_lshl_b32 s27, 1, s21
    v_mov_b32 v163, s25
    v_mov_b32 v164, s26
    v_mov_b32 v165, s27
    v_mov_b32 v166, 0
    v_mov_b32 v167, -1
    """)
    for k in range(3): e(f"ds_write_b32 v160, v56 offset:{256*k}")
    epoch_tag(e)
    e.c("workgroup 0 initialises every sync line: {0, tag, 0, 0}; the lines that carry the checked tag go last")
    e(f"""
    s_mul_i32 s34, s21, {CS}
    s_add_u32 s34, s34, {WS_C1:#x}
    s_mul_i32 s35, s22, {CS}
    s_add_u32 s35, s35, {WS_C2:#x}
    s_cmp_lg_u32 s2, 0
    s_cbranch_scc1 L_nl1
    v_mov_b32 v64, 0
    v_mov_b32 v65, s60
    v_mov_b32 v66, 0
    v_mov_b32 v67, 0
    s_mov_b32 s25, {WS_C2:#x}
    buffer_store_dwordx4 v[64:67], v62, s[12:15], s25 offen sc1
    s_mov_b64 exec, 0xff
    buffer_store_dwordx4 v[64:67], v62, s[12:15], s34 offen offset:2048 sc1
    s_waitcnt vmcnt(0)
    buffer_store_dwordx4 v[64:67], v62, s[12:15], s34 offen sc1
    s_mov_b64 exec, -1
    """)
    e.label("L_nl1")
    e.c("router and gate logits of 8 rows, chunk by chunk from the staged x tile: lane = (row l/8, 16-byte piece l%8)")
    e(f"""
    v_lshrrev_b32 v2, 3, v1
    s_lshl_b32 s25, s21, 3
    v_add_u32 v3, s25, v2
    v_lshlrev_b32 v30, 2, v2
    s_lshl_b32 s25, s24, 3
    v_add_u32 v31, s25, v2
    v_bfe_u32 v4, v3, 1, 3
    v_and_b32 v5, 7, v1
    v_xor_b32 v4, v4, v5
    v_lshlrev_b32 v4, 4, v4
    v_lshl_add_u32 v28, v3, 7, v4
    v_lshlrev_b32 v5, 4, v5
    v_add_u32 v29, {L_WV}, v5
    v_mov_b32 v4, 0
    v_mov_b32 v5, 0
    s_mov_b32 s25, 0
    """)
    gate(e, "g_b0")
    e("s_barrier\ns_waitcnt vmcnt(0)")
    e.label("L_hd")
    e("""
    s_add_u32 s26, s25, s23
    s_and_b32 s26, s26, 7
    s_lshl_b32 s26, s26, 7
    v_add_u32 v2, s26, v29
    ds_read_b128 v[20:23], v2
    ds_read_b128 v[24:27], v2 offset:1024
    ds_read_b128 v[16:19], v28
    v_add_u32 v28, 8192, v28
    s_barrier
    s_cmp_lg_u32 s25, 5
    s_cbranch_scc1 L_hd1
    s_mov_b64 exec, 1
    buffer_load_dword v63, v56, s[12:15], s34 offen offset:4 sc1
    s_mov_b64 exec, -1
    """)
    e.label("L_hd1")
    e("s_add_u32 s25, s25, 1\ns_waitcnt lgkmcnt(0)")
    for j in range(4):
        e(f"v_dot2c_f32_bf16 v4, v{16+j}, v{20+j}")
        e(f"v_dot2c_f32_bf16 v5, v{16+j}, v{24+j}")
    e("s_cmp_lt_u32 s25, 8\ns_cbranch_scc1 L_hd")
    e.c("the sync line this workgroup ORs into first must carry this launch's tag")
    e(f"""
    s_setprio 3
    s_mov_b64 exec, 1
    s_waitcnt vmcnt(0)
    v_cmp_ne_u32 vcc, s60, v63
    s_cbranch_vccz L_pv_x
    """)
    poll(e, "pv", "buffer_load_dword v63, v56, s[12:15], s34 offen offset:4 sc1", "v_cmp_ne_u32 vcc, s60, v63", narrow=False)
    e("s_mov_b64 exec, -1")
    for m in DPP6[:3]:
        e(f"v_add_f32_dpp v4, v4, v4 {m} bank_mask:0xf\nv_add_f32_dpp v5, v5, v5 {m} bank_mask:0xf\ns_nop 0")
    e(f"""
    v_mul_f32 v5, {NLOG2E:#x}, v5
    v_exp_f32 v5, v5
    v_ashrrev_i32 v2, 31, v4
    v_add_f32 v5, 1.0, v5
    v_rcp_f32 v16, v5
    v_or_b32 v2, 0x80000000, v2
    v_xor_b32 v19, v2, v4
    v_not_b32 v18, v31
    s_mov_b32 s28, 0x80808080
    s_mov_b32 s29, 0x80808080
    s_mov_b64 exec, s[28:29]
    ds_max_u64 v161, v[18:19] offset:8
    s_mov_b64 exec, 1
    ds_read_b64 v[18:19], v161 offset:8
    s_lshl_b32 s26, s24, 5
    s_add_u32 s26, s26, {WS_G:#x}
    s_lshl_b32 s25, 1, s22
    v_mov_b32 v57, s25
    v_mov_b32 v5, s60
    v_mov_b32 v20, s25
    s_waitcnt lgkmcnt(0)
    """)
    stamp(e, 8)
    e("""
    s_barrier
    s_barrier
    buffer_atomic_or v20, v56, s[12:15], s34 offen sc0
    """)
    stamp(e, 5)
    NR = int(OPT.get("nr", 4 + int(OPT.get("npeel", 3))))
    e(f"""
    s_barrier
    s_waitcnt vmcnt(0)
    v_or_b32 v63, v20, v57
    v_bcnt_u32_b32 v2, v63, 0
    v_cmp_gt_u32 vcc, {NR}, v2
    s_cbranch_vccz L_p1_y
    """)
    poll(e, "p1", "buffer_atomic_or v63, v56, s[12:15], s34 offen sc0", f"v_bcnt_u32_b32 v2, v63, 0\nv_cmp_gt_u32 vcc, {NR}, v2", narrow=False)
    e.label("L_p1_y")
    e("""
    ds_write_b32 v161, v63 offset:16
    v_cmp_ne_u32 vcc, -1, v63
    s_waitcnt lgkmcnt(0)
    """)
    gate(e, "g_b10")
    e("s_barrier")
    stamp(e, 6)
    e("""
    s_mov_b64 exec, s[28:29]
    buffer_store_dword v16, v30, s[12:15], s26 offen sc1
    s_mov_b64 exec, 1
    buffer_atomic_umax_x2 v[18:19], v56, s[12:15], s34 offen offset:2056
    s_cbranch_vccz L_pf_x
    """)
    e(f"s_sleep {int(OPT.get('pfd', 10))}")
    poll(e, "pf", "buffer_atomic_or v63, v56, s[12:15], s34 offen sc0", "v_cmp_ne_u32 vcc, -1, v63", narrow=False, sleep=int(OPT.get("pfs", 4)))
    e("""
    ds_write_b32 v161, v167 offset:16
    buffer_atomic_or v57, v56, s[12:15], s34 offen offset:2048
    s_mov_b64 exec, -1
    """)
    e(f"""
    {"s_branch L_noy" if OPT.get("nohelp") else ""}
    s_setprio {OPT.get("hp", 0)}
    """)
    def stage(P, size, voff, rowb, lo, hi, name, win=None):
        if P is not None:
            srd(e, 8, P, size)
            e(f"s_mov_b32 s29, {lo}")
        e.label(f"L_st{name}")
        e(f"""
        s_mov_b32 m0, s29
        s_add_u32 s29, s29, 1024
        buffer_load_dwordx4 v{voff}, s[8:11], s99 offen lds
        s_add_u32 s99, s99, {8*rowb}
        {f"s_waitcnt vmcnt({win})" if win is not None else ""}
        s_cmp_lt_u32 s29, {hi}
        s_cbranch_scc1 L_st{name}
        """)
    def frags(base, buf):
        for f in range(8):
            o = buf * 8192 + (f // 4) * 4096 + (f % 4) * 32
            if f == 7: e("s_waitcnt lgkmcnt(8)")
            e(f"ds_read_b64_tr_b16 {vr(base+4*f,2)}, v60 offset:{o}")
            e(f"ds_read_b64_tr_b16 {vr(base+4*f+2,2)}, v60 offset:{o+512}")
        e("s_waitcnt lgkmcnt(0)")
    def wo_setup():
        srd(e, 16, P_WO, 0x80000)
        e("s_lshl_b32 s30, s68, 14\ns_and_b32 s30, s30, 0xffff\ns_mov_b32 s31, 0\ns_lshl_b32 s100, s69, 7")
    def wo_batch(name, n, win=None, upto=None):
        e(f"s_add_u32 s33, s31, {n}" if upto is None else f"s_mov_b32 s33, {upto}")
        e.label(f"L_wo{name}")
        e("""
        s_mov_b32 m0, s30
        s_lshl_b32 s32, s30, 3
        s_add_u32 s32, s32, s100
        """)
        for k in range(4):
            e(f"buffer_load_dwordx4 v59, s[16:19], s32 offen offset:{k*1024} lds")
            if k < 3: e("s_add_u32 s32, s32, 7168")
            if win is not None: e(f"s_waitcnt vmcnt({win})")
        e("""
        s_add_u32 s30, s30, 4096
        s_and_b32 s30, s30, 0xffff
        s_add_u32 s31, s31, 4
        s_cmp_lt_u32 s31, s33
        """)
        e(f"s_cbranch_scc1 L_wo{name}")
    wo_setup()
    e(f"""
    s_cmp_ge_u32 s2, {NMOE}
    s_cbranch_scc1 L_a0
    s_mul_i32 s66, s65, {64*2752}
    s_lshl_b32 s27, s64, 7
    s_add_u32 s66, s66, s27
    s_mov_b32 s99, s66
    """)
    SW = int(OPT.get("sw", 2))
    stage(P_WG, 512 * 2752, 14, 2752, L_M, L_M + 8192, "g", SW)
    e("s_mov_b32 s99, s66")
    stage(P_WU, 512 * 2752, 14, 2752, L_M + 8192, L_M + 16384, "u", SW)
    e("s_branch L_a1")
    e.label("L_a0")
    wo_batch("n", 0, win=SW, upto=24)
    e.label("L_a1")
    e(f"s_mov_b32 s25, {WS_C1:#x}\ns_mov_b64 exec, 0xff")
    poll(e, "pa", "buffer_load_dwordx4 v[16:19], v62, s[12:15], s25 offen offset:2048 sc1", "v_cmp_ne_u32 vcc, -1, v16", sleep=16, narrow=False, lowprio=OPT.get("hp", 0))
    e(f"""
    ds_max_u64 v161, v[18:19]
    s_mov_b64 exec, 1
    ds_read_b32 v2, v161
    s_cmp_lg_u32 s2, 0
    s_cbranch_scc1 L_noep
    s_mov_b32 s27, {WS_EP:#x}
    buffer_store_dword v5, v56, s[12:15], s27 offen
    """)
    e.label("L_noep")
    e("""
    s_setprio 3
    s_waitcnt lgkmcnt(0)
    v_readfirstlane_b32 s63, v2
    s_mov_b64 exec, -1
    s_setprio HPRIO
    s_nop 1
    s_not_b32 s63, s63
    s_min_u32 s63, s63, 2047
    """)
    stamp(e, 1)
    e(f"""
    s_cmp_ge_u32 s2, {NMOE}
    s_cbranch_scc1 L_worest
    s_lshl_b32 s27, s63, 10
    s_lshl_b32 s28, s65, 7
    s_add_u32 s27, s27, s28
    """)
    for f in range(8):
        e(f"buffer_load_dwordx4 {vr(16+4*f,4)}, v{6+f%4}, s[4:7], s27 offen offset:{(f//4)*64}")
    frags(64, 0); frags(96, 1)
    e("s_waitcnt vmcnt(0)")
    for f in range(8):
        e(f"v_mfma_f32_16x16x32_bf16 v[48:51], {vr(16+4*f,4)}, {vr(64+4*f,4)}, {'0' if f == 0 else 'v[48:51]'}")
        if OPT.get("pace"): e(f"s_sleep {OPT['pace']}")
        e(f"v_mfma_f32_16x16x32_bf16 v[52:55], {vr(16+4*f,4)}, {vr(96+4*f,4)}, {'0' if f == 0 else 'v[52:55]'}")
        if OPT.get("pace"): e(f"s_sleep {OPT['pace']}")
    e(f"""
    s_lshl_b32 s66, s64, 12
    s_add_u32 s66, s66, {WS_P1:#x}
    s_lshl_b32 s27, s65, 9
    s_add_u32 s27, s27, s66
    s_mul_i32 s67, s64, {CS}
    s_add_u32 s67, s67, {WS_C3:#x}
    s_nop 1
    buffer_store_dword v48, v61, s[12:15], s27 offen sc1
    buffer_store_dword v52, v61, s[12:15], s27 offen offset:256 sc1
    """)
    e("s_lshl_b32 s99, s64, 16\ns_lshl_b32 s28, s65, 7\ns_add_u32 s99, s99, s28")
    stage(P_WD, 1376 * 1024, 58, 1024, L_M, L_M + 4096, "d1")
    e("""
    s_waitcnt vmcnt(0)
    s_mov_b64 exec, 1
    buffer_atomic_or v163, v56, s[12:15], s67 offen
    s_mov_b64 exec, -1
    """)
    stage(None, 0, 58, 1024, 0, L_M + 8192, "d2")
    e("s_waitcnt vmcnt(0)")
    stamp(e, 2)
    e("s_mov_b64 exec, 1")
    poll(e, "pc", "buffer_load_dword v2, v56, s[12:15], s67 offen sc1", "v_cmp_ne_u32 vcc, 0xff, v2", narrow=False, sleep=16, lowprio=OPT.get("hp", 0))
    e("s_mov_b64 exec, -1")
    for r in range(8):
        e(f"buffer_load_dword v{16+2*r}, v61, s[12:15], s66 offen offset:{r*512} sc1")
        e(f"buffer_load_dword v{17+2*r}, v61, s[12:15], s66 offen offset:{r*512+256} sc1")
    wo_batch("c", 8)
    frags(128, 0)
    e(f"""
    s_cmp_eq_u32 s64, 21
    s_cselect_b32 exec_hi, 0, -1
    s_setprio 3
    s_waitcnt vmcnt(8)
    v_pk_add_f32 v[16:17], v[16:17], v[18:19]
    v_pk_add_f32 v[20:21], v[20:21], v[22:23]
    v_pk_add_f32 v[24:25], v[24:25], v[26:27]
    v_pk_add_f32 v[28:29], v[28:29], v[30:31]
    v_pk_add_f32 v[16:17], v[16:17], v[20:21]
    v_pk_add_f32 v[24:25], v[24:25], v[28:29]
    v_pk_add_f32 v[16:17], v[16:17], v[24:25]
    v_mul_f32 v2, {NLOG2E:#x}, v16
    v_exp_f32 v2, v2
    v_mul_f32 v16, v16, v17
    v_add_f32 v2, 1.0, v2
    v_rcp_f32 v2, v2
    s_nop 0
    v_mul_f32 v2, v2, v16
    v_cvt_pk_bf16_f32 v2, v2, v2
    ds_write_b16 v162, v2
    s_setprio HPRIO
    s_mov_b64 exec, -1
    """)
    for f in range(8):
        e(f"ds_read_b128 {vr(16+4*f,4)}, v{10+f%4} offset:{(f//4)*64}")
    e("s_waitcnt lgkmcnt(0)")
    for f in range(8):
        e(f"v_mfma_f32_16x16x32_bf16 v[48:51], {vr(16+4*f,4)}, {vr(128+4*f,4)}, {'0' if f == 0 else 'v[48:51]'}")
        if OPT.get("pace"): e(f"s_sleep {OPT['pace']}")
    e(f"""
    s_mul_i32 s27, s65, 5632
    s_lshl_b32 s28, s64, 8
    s_add_u32 s27, s27, s28
    s_add_u32 s27, s27, {WS_YP:#x}
    s_mul_i32 s67, s65, {CS}
    s_add_u32 s67, s67, {WS_C4:#x}
    s_nop 1
    buffer_store_dword v48, v61, s[12:15], s27 offen sc1
    """)
    wo_batch("d", 8)
    e("""
    s_waitcnt vmcnt(0)
    s_mov_b64 exec, 1
    buffer_atomic_or v164, v56, s[12:15], s67 offen
    s_mov_b64 exec, -1
    """)
    stamp(e, 3)
    e.label("L_worest")
    wo_batch("r", 0, win=int(OPT.get("ww", 7)), upto=64)
    e("s_waitcnt vmcnt(0)")
    stamp(e, 4)
    e(f"""
    s_lshr_b32 s27, s63, 6
    s_cmp_lg_u32 s27, s68
    s_cbranch_scc1 L_noy
    s_mul_i32 s67, s69, {CS}
    s_add_u32 s67, s67, {WS_C4:#x}
    s_mov_b64 exec, 1
    """)
    poll(e, "pm", "buffer_load_dword v2, v56, s[12:15], s67 offen sc1", "v_cmp_ne_u32 vcc, 0x3fffff, v2", narrow=False, sleep=16, lowprio=OPT.get("hp", 0))
    e(f"""
    s_mov_b64 exec, -1
    s_mul_i32 s27, s69, 5632
    s_add_u32 s27, s27, {WS_YP:#x}
    s_add_u32 s28, s27, 4096
    """)
    for c in range(22):
        e(f"buffer_load_dword v{16+c}, v61, s[12:15], s{27 + c//16} offen offset:{(c%16)*256} sc1")
    e("s_setprio 3\ns_waitcnt vmcnt(0)")
    for c in range(1, 11): e(f"v_pk_add_f32 v[16:17], v[16:17], {vr(16+2*c,2)}")
    e("v_add_f32 v16, v16, v17\nds_write_b32 v160, v16 offset:256")
    e.label("L_noy")
    e(f"""
    s_setprio 3
    s_mul_i32 s26, s68, {CS}
    s_add_u32 s26, s26, {WS_C2:#x}
    s_mov_b64 exec, 1
    s_waitcnt lgkmcnt(0)
    """)
    stamp(e, 7)
    gate(e, "g_b11")
    T1 = int(OPT.get("t1", 4))
    e(f"""
    s_barrier
    buffer_atomic_or v166, v56, s[12:15], s26 offen sc0
    s_barrier
    buffer_atomic_or v165, v56, s[12:15], s35 offen
    s_waitcnt vmcnt(1)
    v_bcnt_u32_b32 v3, v166, 0
    v_cmp_gt_u32 vcc, {T1}, v3
    s_cbranch_vccz L_p2a_y
    """)
    poll(e, "p2a", "buffer_atomic_or v166, v56, s[12:15], s26 offen sc0", f"v_bcnt_u32_b32 v3, v166, 0\nv_cmp_gt_u32 vcc, {T1}, v3", narrow=False)
    e.label("L_p2a_y")
    e("""
    v_and_b32 v2, 0xff, v166
    ds_write_b32 v161, v2 offset:20
    v_cmp_ne_u32 vcc, 0xff, v2
    s_waitcnt lgkmcnt(0)
    s_barrier
    s_cbranch_vccz L_p2_x
    """)
    poll(e, "p2", "buffer_atomic_or v166, v56, s[12:15], s26 offen sc0", "v_cmp_ne_u32 vcc, 0xff, v166", narrow=False)
    e("s_barrier")
    if not OPT.get("tail"): stamp_out(e)
    e.label("L_end")
    e("s_endpgm")

def main(path):
    e = Asm()
    kn = NAME + "_kernel"
    e(f".globl {kn}\n.p2align 8\n.type {kn},@function")
    e.label(kn)
    entry(e)
    producer(e)
    compute(e)
    attention(e)
    helper(e)
    for p in check_text(e.text()): print("HAZARD", p)
    body = e.text().replace("HPRIO", str(OPT.get("hp", 0)))
    hdr = f"""; gated mix of an MHA block and a top-1 routed FFN branch, gfx950: one persistent launch.
; @launch grid=(256,1,1) block=(576,1,1) lds={LDS_TOTAL}
.amdgcn_target "amdgcn-amd-amdhsa--gfx950"
.text
"""
    tail = f""".section .rodata,"a"
.p2align 6
.amdhsa_kernel {kn}
  .amdhsa_next_free_vgpr 168
  .amdhsa_next_free_sgpr 102
  .amdhsa_accum_offset 168
  .amdhsa_group_segment_fixed_size 0
  .amdhsa_kernarg_size 96
  .amdhsa_user_sgpr_count 2
  .amdhsa_user_sgpr_kernarg_segment_ptr 1
  .amdhsa_system_sgpr_workgroup_id_x 1
.end_amdhsa_kernel
"""
    if OPT.get("empty"):
        pos, blk, lds, nv = OPT["empty"].split(",")
        L0 = f"; @launch kernel={kn} grid=(256,1,1) block=(576,1,1) lds={LDS_TOTAL}\n"
        L1 = f"; @launch kernel=empty_kernel grid=(256,1,1) block=({blk},1,1) lds={lds}\n"
        hdr = "; diag\n" + (L1 + L0 if pos == "b" else L0 + L1 if pos == "a" else L0) + '.amdgcn_target "amdgcn-amd-amdhsa--gfx950"\n.text\n'
        if pos != "n":
            body += ".globl empty_kernel\n.p2align 8\n.type empty_kernel,@function\nempty_kernel:\n    s_endpgm\n"
            tail += ".p2align 6\n" + tail[tail.index(".amdhsa_kernel"):].replace(kn, "empty_kernel").replace("168", nv)
    open(path, "w").write(hdr + body + tail)

if __name__ == "__main__":
    for o in sys.argv[2:]:
        if "=" in o: OPT[o.split("=")[0]] = o.split("=")[1]
        else: OPT[o] = True
    INSTR = bool(OPT.get("instr"))
    main(sys.argv[1])
```

```python
import sys
from asmlib import *

NAME = "gated_mix__mha_block__moe_arch_mod__prompt"
OPT = {}
HS     = 0x20000
WS_KV  = 0x000000
WS_OF  = 0x600000
WS_G   = 0x802000
WS_P1  = 0x830000
WS_YP  = 0x850000
WS_EP  = 0x808000
CS = 4352
WS_C1  = 0x8C0000
WS_C2  = WS_C1 + 8 * CS
WS_C3  = WS_C2 + 32 * CS
WS_C4  = WS_C3 + 24 * CS
WS_DBG = 0x880000
WS_SIZE = 0x920000
QSCALE = 0x3EB8AA3B
NLOG2E = 0xBFB8AA3B
NMOE = 176
L_X = 0; L_W = 65536
SLOT = 2304; L_R = 131072
L_QX = 149504
L_MS = L_QX + 8192
L_M = 65536
L_RM = L_MS + 16
L_H = L_MS + 512
L_WV = L_MS + 1024
LDS_TOTAL = 163840
POLL_MAX = 1 << 17

INSTR = False
def stamp(e, i, force=False):
    import inspect
    if OPT.get("est") and i in (2, 3, 4, 5) and "est" not in (inspect.stack()[1].code_context[0]): return
    if INSTR: e(f"{'s_memrealtime' if OPT.get('rt') else 's_memtime'} s[{70+2*i}:{71+2*i}]")
def tstamp(e, i):
    if OPT.get("tail"): stamp(e, i)
def gate(e, name):
    if not OPT.get(name): return
    e.label(f"L_gate_{name}")
    e(f"""
    s_memrealtime s[92:93]
    s_waitcnt lgkmcnt(0)
    s_sub_u32 s92, s92, s90
    s_cmp_lt_u32 s92, {int(float(OPT[name]) * 100)}
    s_cbranch_scc1 L_gate_{name}
    """)
def stamp_init(e):
    if not INSTR and any(k.startswith("g_") for k in OPT): e("s_memrealtime s[90:91]")
    if INSTR:
        e("s_memrealtime s[90:91]")
        for i in range(10): e(f"s_mov_b64 s[{70+2*i}:{71+2*i}], 0")
        stamp(e, 0)
def stamp_out(e):
    if not INSTR: return
    e("s_waitcnt vmcnt(0)")
    stamp(e, 9)
    e("s_memrealtime s[92:93]")
    e("s_waitcnt lgkmcnt(0)")
    e("s_mov_b64 exec, 1")
    e("s_lshl_b32 s96, s2, 4\ns_add_u32 s96, s96, s20\ns_lshl_b32 s96, s96, 6")
    e(f"s_add_u32 s96, s96, {WS_DBG:#x}")
    for i in range(10): e(f"v_mov_b32 v{4+i}, s{70+2*i}")
    e("v_mov_b32 v14, s90\nv_mov_b32 v15, s92\nv_mov_b32 v2, 0")
    for i in range(3): e(f"buffer_store_dwordx4 v[{4+4*i}:{7+4*i}], v2, s[12:15], s96 offen offset:{16*i}")

def isize(l):
    p = parse(l)
    if p is None: return 0
    if p["op"] in ("v_exp_f32", "s_waitcnt", "s_barrier", "s_nop", "s_setprio", "v_dot2c_f32_bf16") or p["op"].startswith(("s_cbranch", "s_branch")): return 4
    return 8
def touch_chain(e, name, nseg, step=None):
    step = step or int(OPT.get("tstep", 128))
    L = e.lines
    a = L.index(f";@{name}["); b = L.index(f";@{name}]")
    pts = [a + 1]; acc = 0
    for i in range(a + 1, b):
        acc += isize(L[i])
        prev = L[i].strip()
        if acc >= step - 4 and not prev.startswith(("s_cmp", "s_branch", "s_endpgm")) and isize(L[i]):
            pts.append(i + 1); acc = 0
    n = len(pts); firsts = [(k * n) // nseg for k in range(nseg)]
    out = L[:a + 1]; k = 0
    for i in range(a + 1, b + 1):
        if k < n and pts[k] == i:
            tgt = f"L_{name}_ret" if (k + 1 == n or k + 1 in firsts) else f"L_{name}_{k+1}"
            if k in firsts: out.append(f"L_{name}_s{firsts.index(k)}:")
            out.append(f"L_{name}_{k}:"); out.append(f"    s_cbranch_vccnz {tgt}"); k += 1
        out.append(L[i])
    e.lines = out + L[b + 1:]

def srd(e, d, base, size):
    e(f"s_mov_b32 s{d}, s{base}\ns_mov_b32 s{d+1}, s{base+1}\ns_mov_b32 s{d+2}, {size:#x}\ns_mov_b32 s{d+3}, 0x20000")

DPP6 = ("row_shr:1 row_mask:0xf", "row_shr:2 row_mask:0xf", "row_shr:4 row_mask:0xf", "row_shr:8 row_mask:0xf",
        "row_bcast:15 row_mask:0xa", "row_bcast:31 row_mask:0xc")
P_X, P_WQKV, P_WO, P_WR, P_WG, P_WU, P_WD, P_GW, P_OUT, P_DBG, P_WS = 36, 38, 40, 44, 46, 48, 50, 52, 54, 56, 58

def poll(e, name, load, cmp_, sleep=0, narrow=True, lowprio=None):
    e("s_mov_b32 s61, 0")
    e.label(f"L_{name}")
    e(load)
    e(f"s_add_u32 s61, s61, 1\ns_cmp_gt_u32 s61, {POLL_MAX}\ns_cbranch_scc1 L_{name}_x")
    e("s_waitcnt vmcnt(0)")
    if lowprio is not None: e("s_setprio 3")
    e(cmp_)
    if lowprio is not None: e(f"s_setprio {lowprio}")
    e(f"s_cbranch_vccz L_{name}_x")
    if narrow: e("s_mov_b64 exec, vcc")
    if sleep: e(f"s_sleep {sleep}")
    e(f"s_branch L_{name}")
    e.label(f"L_{name}_x")
    e("s_waitcnt vmcnt(0)")

def entry(e):
    e("""
    s_cmp_ge_u32 s2, 256
    s_cbranch_scc1 L_end
    """)
    stamp_init(e)
    e("""
    s_load_dwordx16 s[36:51], s[0:1], 0
    s_load_dwordx8 s[52:59], s[0:1], 64
    """)
    if not OPT.get("nopf"):
        e.c("pull the whole kernel text towards the L2 while the kernel arguments are in flight (one dword per 32 B of code)")
        e("s_getpc_b64 s[62:63]")
        e.label("L_text0")
        e("""
        v_lshrrev_b32 v2, 6, v0
        v_lshlrev_b32 v3, 5, v0
        v_readfirstlane_b32 s20, v2
        v_min_u32 v3, L_end-L_text0, v3
        s_lshr_b32 s29, s2, 3
        s_xor_b32 s28, s29, s20
        s_and_b32 s28, s28, PFMASK
        s_cbranch_scc1 L_nopf
        global_load_dword v159, v3, s[62:63]
        """.replace("PFMASK", str(OPT.get("pfm", 0))))
        e.label("L_nopf")
    e("""
    v_and_b32 v1, 63, v0
    s_and_b32 s28, s2, 7
    s_and_b32 s21, s28, 1
    s_lshl_b32 s21, s21, 2
    s_and_b32 s30, s29, 3
    s_add_u32 s21, s21, s30
    s_lshr_b32 s22, s28, 1
    s_lshl_b32 s22, s22, 3
    s_lshr_b32 s31, s29, 2
    s_add_u32 s22, s22, s31
    s_lshl_b32 s23, s30, 1
    s_add_u32 s23, s23, s31
    s_lshl_b32 s68, s28, 2
    s_add_u32 s68, s68, s30
    s_mov_b32 s69, s31
    v_lshlrev_b32 v15, 4, v1
    """)

def common_srd(e):
    e("s_waitcnt lgkmcnt(0)")
    srd(e, 4, P_X, 0x200000)
    srd(e, 12, P_WS, WS_SIZE)
def epoch_load(e):
    e(f"s_add_u32 s62, s{P_WS}, {WS_EP:#x}\ns_addc_u32 s63, s{P_WS+1}, 0\ns_load_dword s60, s[62:63], 0")
def epoch_tag(e):
    e("s_waitcnt lgkmcnt(0)\ns_mul_i32 s60, s60, 0x9E3779B1\ns_add_u32 s60, s60, 0x7F4A7C15")

def producer(e):
    e(f"""
    v_lshrrev_b32 v2, 3, v1
    v_and_b32 v3, 7, v1
    v_lshrrev_b32 v4, 4, v1
    v_xor_b32 v5, v3, v4
    v_lshlrev_b32 v5, 4, v5
    v_lshl_add_u32 v10, v2, 10, v5
    v_xor_b32 v11, 64, v10
    v_add_u32 v11, 7168, v11
    v_and_b32 v4, 1, v4
    v_mul_u32_u24 v6, 3072, v2
    v_lshlrev_b32 v7, 2, v4
    v_xor_b32 v7, v3, v7
    v_lshl_add_u32 v12, v7, 4, v6
    s_lshl_b32 s25, s22, 16
    s_lshl_b32 s26, s20, 14
    s_add_u32 s25, s25, s26
    s_mul_i32 s26, s20, 49152
    s_lshl_b32 s27, s21, 7
    s_add_u32 s26, s26, s27
    s_lshl_b32 s27, s20, 11
    s_lshl_b32 s28, s20, 12
    s_mov_b32 s24, 0
    s_mov_b32 s6, 0x200000
    s_mov_b32 s7, 0x20000
    s_mov_b32 s18, 0x180000
    s_mov_b32 s19, 0x20000
    {"s_memtime s[74:75]" if OPT.get("est") else ""}
    s_waitcnt lgkmcnt(0)
    {"s_memtime s[76:77]" if OPT.get("est") else ""}
    s_mov_b64 s[4:5], s[{P_X}:{P_X+1}]
    s_mov_b64 s[16:17], s[{P_WQKV}:{P_WQKV+1}]
    {"s_mov_b64 s[98:99], s[38:39]" if OPT.get("spf") else ""}
    s_cmp_ge_u32 s20, 4
    s_cbranch_scc1 L_notprod
    """)
    e.c("chunk s24: x -> X tile, Wk|Wv -> ring slot s24 & 3")
    e.label("L_pi")
    e(f"""
    s_add_u32 s30, s23, s24
    s_and_b32 s30, s30, 7
    s_lshl_b32 s31, s30, 7
    s_add_u32 s31, s31, s25
    s_mul_i32 s32, s30, 196608
    s_mov_b32 m0, s27
    s_add_u32 s32, s32, s26
    buffer_load_dwordx4 v10, s[4:7], s31 offen lds
    buffer_load_dwordx4 v11, s[4:7], s31 offen offset:1024 lds
    s_add_u32 s33, s32, {1024 + 24576 - 2048}
    s_add_u32 m0, s28, {L_W}
    s_add_u32 s32, s32, 1024
    buffer_load_dwordx4 v12, s[16:19], s32 offen lds
    buffer_load_dwordx4 v12, s[16:19], s32 offen offset:1024 lds
    buffer_load_dwordx4 v12, s[16:19], s33 offen offset:2048 lds
    buffer_load_dwordx4 v12, s[16:19], s33 offen offset:3072 lds
    s_add_u32 s27, s27, 8192
    s_add_u32 s28, s28, 16384
    s_and_b32 s28, s28, 0xffff
    s_add_u32 s24, s24, 1
    s_and_b32 s30, s24, 5
    s_cmp_eq_u32 s30, 1
    s_cbranch_scc1 L_pi
    s_cmp_lg_u32 s24, 2
    s_cbranch_scc1 L_pb
    s_waitcnt vmcnt(6)
    """)
    stamp(e, 1)
    e.label("L_pb")
    e("s_waitcnt vmcnt(12)")
    e("s_barrier")
    if OPT.get("spf"):
        NH = int(OPT["spf"])
        e("s_cmp_gt_u32 s24, 6\ns_cbranch_scc1 L_nspf")
        for r in range(4):
            for h in range(NH): e(f"s_load_dword s{100 + (r & 1)}, s[98:99], {r*3072 + h*64}")
        e("s_add_u32 s98, s98, 12288\ns_addc_u32 s99, s99, 0")
        e.label("L_nspf")
    e("""
    s_cmp_lt_u32 s24, 8
    s_cbranch_scc1 L_pi
    """)
    e.c("Wq chunk s24 - 8 (s27 has walked to the W ring)")
    e.label("L_pq")
    e(f"""
    s_add_u32 s30, s23, s24
    s_and_b32 s30, s30, 7
    s_mul_i32 s32, s30, 196608
    s_add_u32 s32, s32, s26
    s_mov_b32 m0, s27
    s_add_u32 s33, s32, {24576 - 1024}
    buffer_load_dwordx4 v12, s[16:19], s32 offen lds
    buffer_load_dwordx4 v12, s[16:19], s33 offen offset:1024 lds
    s_add_u32 s27, s27, 8192
    s_add_u32 s24, s24, 1
    s_cmp_eq_u32 s24, 10
    s_cbranch_scc0 L_pq1
    s_waitcnt vmcnt(10)
    s_barrier
    """)
    e.label("L_pq1")
    e("""
    s_cmp_eq_u32 s24, 12
    s_cbranch_scc0 L_pq2
    s_waitcnt vmcnt(8)
    s_barrier
    """)
    e.label("L_pq2")
    e("""
    s_cmp_eq_u32 s24, 14
    s_cbranch_scc0 L_pq3
    s_waitcnt vmcnt(4)
    """)
    stamp(e, 2)
    e("s_barrier")
    e.label("L_pq3")
    e("""
    s_cmp_lt_u32 s24, 16
    s_cbranch_scc1 L_pq
    s_waitcnt vmcnt(4)
    """)
    stamp(e, 3)
    e("""
    s_barrier
    s_barrier
    s_waitcnt vmcnt(0)
    """)
    stamp(e, 4)
    e("s_barrier")
    stamp(e, 5)
    e("s_branch L_setup")
    e.label("L_notprod")
    e("""
    s_cmp_eq_u32 s20, 8
    s_cbranch_scc1 L_help
    """)
    e.label("L_setup")
    if OPT.get("est"): stamp(e, 4)
    srd(e, 12, P_WS, WS_SIZE)
    if OPT.get("spf"):
        e(f"""
        s_and_b32 s30, s23, 7
        s_mul_i32 s30, s30, 196608
        s_and_b32 s31, s20, 3
        s_mul_i32 s31, s31, 49152
        s_add_u32 s30, s30, s31
        s_lshl_b32 s31, s21, 7
        s_add_u32 s30, s30, s31
        s_add_u32 s98, s{P_WQKV}, s30
        s_addc_u32 s99, s{P_WQKV+1}, 0
        """)
    attn_setup(e)
    if OPT.get("est"): stamp(e, 5)
    e("""
    s_mov_b64 vcc, 0
    s_cmp_ge_u32 s20, 4
    s_cbranch_scc1 L_comp
    """)
    e(f"""
    buffer_load_dwordx4 {vr(XR,4)}, v{A_OUT}, s[4:7], s64 offen
    buffer_load_dwordx4 {vr(XR+4,4)}, v{A_OUT}, s[4:7], s64 offen offset:16
    s_branch L_b10
    """)

def compute(e):
    e.label("L_comp")
    AK, AV, AQ, F = 16, 32, 48, 64
    e("""
    s_and_b32 s24, s20, 1
    s_and_b32 s25, s20, 2
    v_and_b32 v2, 31, v1
    v_lshrrev_b32 v3, 5, v1
    v_lshlrev_b32 v4, 7, v2
    s_lshl_b32 s26, s24, 12
    v_add_u32 v4, s26, v4
    v_bfe_u32 v5, v2, 1, 3
    v_xor_b32 v5, v5, v3
    """)
    for ks in range(4):
        e(f"v_xor_b32 v6, {2*ks}, v5\nv_lshl_add_u32 v{8+ks}, v6, 4, v4")
    e(f"""
    v_bfe_u32 v4, v1, 4, 1
    v_bfe_u32 v5, v1, 2, 2
    v_and_b32 v6, 3, v1
    v_bfe_u32 v7, v1, 3, 1
    v_lshlrev_b32 v7, 1, v7
    v_xor_b32 v7, v7, v4
    v_xor_b32 v7, s25, v7
    v_lshlrev_b32 v7, 5, v7
    v_lshl_add_u32 v7, v5, 7, v7
    v_lshl_add_u32 v7, v6, 3, v7
    v_add_u32 v7, {L_W}, v7
    v_lshl_add_u32 v12, v3, 11, v7
    v_lshl_add_u32 v13, v3, 10, v7
    s_lshl_b32 s26, s25, 11
    s_lshl_b32 s27, s24, 10
    s_add_u32 s26, s26, s27
    s_add_u32 s26, s26, {L_QX}
    v_add_u32 v14, s26, v15
    s_lshl_b32 s26, s21, 2
    s_add_u32 s26, s26, s25
    s_mul_i32 s26, s26, {HS}
    s_lshl_b32 s27, s22, 1
    s_add_u32 s27, s27, s24
    s_lshl_b32 s27, s27, 11
    s_add_u32 s26, s26, s27
    s_add_u32 s27, s26, {HS}
    s_lshl_b32 s28, s24, 2
    s_add_u32 s28, s28, s25
    s_mul_i32 s28, s28, {SLOT}
    s_add_u32 s28, s28, {L_R}
    v_and_b32 v7, 15, v1
    v_lshlrev_b32 v7, 4, v7
    v_lshl_add_u32 v7, v3, 8, v7
    v_mul_u32_u24 v5, {SLOT}, v4
    v_add3_u32 v5, v5, v7, s28
    v_mul_u32_u24 v2, {HS}, v4
    v_add_u32 v7, v7, v2
    v_add_u32 v2, s28, v15
    s_mov_b32 s30, {QSCALE:#x}
    s_mov_b32 s31, {QSCALE:#x}
    s_mov_b32 s29, 0x1ffff
    v_mov_b32 v6, {L_W}
    """)
    for r in range(F + 24, F + 48): e(f"v_mov_b32 v{r}, 0")
    e("s_mov_b32 s24, 8\ns_nop 0")
    for D in (AK, AV, AQ): e(f"v_mfma_f32_32x32x16_bf16 {vr(D,16)}, {vr(F+24,4)}, {vr(F+24,4)}, 0")
    if not not OPT.get("touch"):
        e("s_mov_b64 vcc, 1")
        for k in range(3): e(f"s_cmp_eq_u32 s20, {4+k}\ns_cbranch_scc1 L_tc_s{k}")
        e("s_branch L_tc_s3")
        e.label("L_tc_ret")
        e("s_mov_b64 vcc, 0")
    def rd(ks):
        if OPT.get("p1nord"): return
        f = F + 12 * ks; o = ks * 4096
        e(f"ds_read_b128 {vr(f,4)}, v{8+ks}")
        e(f"ds_read_b64_tr_b16 {vr(f+4,2)}, v12 offset:{o}")
        e(f"ds_read_b64_tr_b16 {vr(f+6,2)}, v12 offset:{o+512}")
        e(f"ds_read_b64_tr_b16 {vr(f+8,2)}, v12 offset:{o+1024}")
        e(f"ds_read_b64_tr_b16 {vr(f+10,2)}, v12 offset:{o+1536}")
    def mf(ks):
        if OPT.get("p1nomf"): return
        f = F + 12 * ks
        e(f"v_mfma_f32_32x32x16_bf16 {vr(AK,16)}, {vr(f+4,4)}, {vr(f,4)}, {vr(AK,16)}")
        e(f"v_mfma_f32_32x32x16_bf16 {vr(AV,16)}, {vr(f,4)}, {vr(f+8,4)}, {vr(AV,16)}")
    e(";@tc[")
    e.label("L_cl")
    e("s_waitcnt lgkmcnt(0)")
    e("s_barrier")
    stamp(e, 2)
    rd(0); rd(1); mf(2); rd(2); mf(3)
    e("s_waitcnt lgkmcnt(10)")
    rd(3); mf(0)
    for ks in range(4): e(f"v_add_u32 v{8+ks}, 8192, v{8+ks}")
    e("v_add_u32 v12, 16384, v12\nv_and_or_b32 v12, v12, s29, v6")
    e("s_sub_u32 s24, s24, 1")
    e("s_waitcnt lgkmcnt(10)")
    mf(1)
    e("s_cmp_lg_u32 s24, 0\ns_cbranch_scc1 L_cl")
    e("s_waitcnt lgkmcnt(5)")
    mf(2)
    e("s_waitcnt lgkmcnt(0)")
    mf(3)
    for ks in range(4): e(f"v_subrev_u32 v{8+ks}, 0x10000, v{8+ks}")
    e("s_nop 6")
    e.c("K/V epilogue: publish (write-through) and stage own tiles in ring slot 0")
    T = F
    for j in range(8): e(f"v_cvt_pk_bf16_f32 v{T+j}, v{AK+2*j}, v{AK+2*j+1}")
    e(f"buffer_store_dwordx4 {vr(T,4)}, v15, s[12:15], s26 offen sc1")
    e(f"buffer_store_dwordx4 {vr(T+4,4)}, v15, s[12:15], s27 offen sc1")
    for j in range(8): e(f"v_cvt_pk_bf16_f32 v{T+8+j}, v{AV+2*j}, v{AV+2*j+1}")
    e(f"buffer_store_dwordx4 {vr(T+8,4)}, v7, s[12:15], s26 offen offset:1024 sc1")
    e(f"buffer_store_dwordx4 {vr(T+12,4)}, v7, s[12:15], s26 offen offset:1536 sc1")
    stamp(e, 3)
    e(f"ds_write_b128 v2, {vr(T,4)}")
    e(f"ds_write_b128 v2, {vr(T+4,4)} offset:{SLOT}")
    e(f"ds_write_b128 v5, {vr(T+8,4)} offset:1024")
    e(f"ds_write_b128 v5, {vr(T+12,4)} offset:1536")
    e.c("Q projection, two halves of 16 k-steps")
    FQ = F + 16
    def rdq(cc, ks):
        f = FQ + 8 * ks; o = cc * 8192 + ks * 2048
        e(f"ds_read_b128 {vr(f,4)}, v{8+ks} offset:{cc*8192}")
        e(f"ds_read_b64_tr_b16 {vr(f+4,2)}, v13 offset:{o}")
        e(f"ds_read_b64_tr_b16 {vr(f+6,2)}, v13 offset:{o+512}")
    def mfq(ks):
        f = FQ + 8 * ks
        e(f"v_mfma_f32_32x32x16_bf16 {vr(AQ,16)}, {vr(f+4,4)}, {vr(f,4)}, {vr(AQ,16)}")
    e("s_waitcnt lgkmcnt(0)")
    for (c0, c1) in ((0, 4), (4, 6), (6, 8)):
        e("s_barrier")
        for ks in range(4): rdq(c0, ks)
        for cc in range(c0, c1):
            for ks in range(4):
                e(f"s_waitcnt lgkmcnt({9 if cc < c1 - 1 else 3*(3-ks)})")
                mfq(ks)
                if cc < c1 - 1: rdq(cc + 1, ks)
        if c0 == 4:
            e("s_waitcnt vmcnt(0)")
            stamp(e, 4)
            e("s_barrier")
    e("s_nop 1")
    e("s_nop 9")
    for j in range(8): e(f"v_pk_mul_f32 {vr(AQ+2*j,2)}, {vr(AQ+2*j,2)}, s[30:31]")
    for j in range(8): e(f"v_cvt_pk_bf16_f32 v{AK+j}, v{AQ+2*j}, v{AQ+2*j+1}")
    e(f"ds_write_b128 v14, {vr(AK,4)}")
    e(f"ds_write_b128 v14, {vr(AK+4,4)} offset:2048")
    stamp(e, 5)

SCHEDS = {
 "c1": ("e2 S0p e3 S1 e3 M e3 wv rk e1 r0 e1 r1 e1 pr e2", "e2 S0p e3 S1 e3 wl M e3 m0 xc xs e1 dk e1 dv e1 sa sn lc lt e2"),
 "c3": ("e2 S0p e3 S1 e3 M e3 wv rk e1 r0 e1 r1 e1 pr e2", "e2 S0p m0 xc xs e3 S1 e3 wl M e3 dk e1 dv e1 sa sn lc lt e3"),
 "c4": ("e2 S0p e3 S1 e3 M e4 wv rk r0 r1 e2 pr e2", "e2 S0p e3 S1 e3 wl M e4 m0 xc xs dk dv e2 sa sn lc lt e2"),
 "c5": ("e2 S0p e3 S1 e3 M e3 wv rk e1 r0 e1 r1 e1 m0 xc xs e2", "e2 S0p e3 S1 e3 wl M e3 dk e1 dv e1 sa sn e1 pr lc lt e2"),
 "c6": ("e2 S0p e4 S1 e2 M e3 wv rk e1 r0 e1 r1 e1 pr e2", "e2 S0p e4 S1 e2 wl M e3 m0 xc xs e1 dk e1 dv e1 sa sn lc lt e2"),
 "c7": ("S0p e3 S1 e3 M e3 wv rk e1 r0 e1 r1 e1 pr e4", "S0p e3 S1 e3 wl M e3 m0 xc xs e1 dk e1 dv e1 sa sn lc lt e4"),
 "k1": ("S0p e3 S1 e3 M e3 dk e1 wv r0 e1 r1 e1 pr e4", "S0p e3 S1 e3 M e3 m0 xc xs e1 wl dv e2 sa sn lc lt e4"),
 "k2": ("S0p e3 S1 e3 M e3 dk e1 wv r0 e1 r1 e1 pr e4", "S0p e3 S1 e3 M e3 m0 xc xs wl dv e1 sa sn lc lt e6"),
 "kp": ("e2 S0p e3 S1 e3 M e3 X wv r0 e1 r1 e2 F pr e2", "e2 S0p e3 S1 e3 M e3 m0 xc xs e1 dk2 e1 wl dv e1 sa sn lc lt e2"),
 "v1": ("S0p e3 S1 e3 M e3 vl e3 pr e4", "wv S0p e3 S1 e3 M e3 a0 a1 a2 a3 e1 kl e2 lc lt e4"),
 "v2": ("S0p e3 S1 e3 M e4 vl e2 pr e4", "wv S0p e3 S1 e3 M e4 a0 a1 a2 a3 kl e2 lc lt e4"),
 "v3": ("S0p e3 S1 e3 M e3 vl e3 a0 a1 a2 a3 pr e4", "wv S0p e3 S1 e3 M e3 kl e3 lc lt e4"),
 "w1": ("S0p e3 S1 e3 M e4 vl a0 a1 a2 a3 kl e2 F e4", "wv10 S0p e3 S1 e3 wv9 M e6 pr lc lt e4"),
 "w2": ("S0p e3 S1 e3 M e3 vl e1 a0 a1 a2 a3 kl e2 F e4", "wv9 S0p e3 S1 e3 M e6 pr lc lt e4"),
 "w3": ("S0p e3 S1 vl e3 M e3 a0 a1 a2 a3 kl e3 F e4", "wv9 S0p e3 S1 e3 M e6 pr lc lt e4"),
 "v4": ("S0p e3 S1 e1 vl e2 M e4 a0 a1 a2 a3 e2 pr e3 kl e1", "wv10 S0p e3 S1 e3 wv9 M e6 nop lc lt e4"),
 "v5": ("S0p e3 S1 e3 M e4 vl e2 pr e4", "wv9 S0p e3 S1 e3 wv M e4 a0 a1 a2 a3 kl e2 lc lt e4"),
 "v6": ("S0p e3 S1 e3 M e3 vl e3 pr e4", "wv9 S0p e3 S1 e3 wv M e3 a0 a1 a2 a3 kl e3 lc lt e4"),
 "v7": ("S0p e3 S1 e3 M e2 vl e4 pr e4", "wv9 S0p e3 S1 e3 wv M e2 a0 a1 a2 a3 kl e4 lc lt e4"),
 "v8": ("e2 S0p e3 S1 e3 M e3 vl e2 pr e3", "e2 wv9 S0p e3 S1 e3 wv M e3 a0 a1 a2 a3 kl e2 lc lt e3"),
 "v9": ("S0p e3 S1 e3 M e4 vl e2 a0 a1 a2 a3 pr e4", "wv9 S0p e3 S1 e3 wv M e4 kl e2 lc lt e4"),
 "va": ("S0p e3 S1 e3 M e4 vl e6", "wv9 S0p e3 S1 e3 wv M e4 a0 a1 a2 a3 kl e2 pr lc lt e4"),
 "vb": ("S0p e3 S1 e3 M e4 vl e2 pr e4", "wv9 S0p e3 S1 e3 wv M a0 a1 a2 a3 e4 kl e2 lc lt e4"),
 "c8": ("S0p e3 S1 e3 M e5 wv rk e1 r0 e1 r1 e1 pr e2", "S0p e3 S1 e3 wl M e5 m0 xc xs e1 dk e1 dv e1 sa sn lc lt e2"),
 "c9": ("S0p e4 S1 e4 M e3 wv rk e1 r0 e1 r1 e1 pr e2", "S0p e4 S1 e4 wl M e3 m0 xc xs e1 dk e1 dv e1 sa sn lc lt e2"),
}
A_K, A_V0, A_V1, A_IDX, A_VG, A_KG, A_ONE, A_QX, A_MR, A_ML, A_MW, A_OUT, A_WO, A_O, A_ROW = range(144, 159)
XR = 160
def attn_setup(e):
    e(f"""
    s_and_b32 s40, s20, 3
    s_lshr_b32 s41, s20, 2
    s_lshl_b32 s42, s21, 2
    s_add_u32 s42, s42, s40
    s_mul_i32 s43, s42, {HS}
    s_lshl_b32 s44, s41, 11
    s_add_u32 s43, s43, s44
    s_add_u32 s8, s{P_WS}, s43
    s_addc_u32 s9, s{P_WS+1}, 0
    s_mov_b32 s10, 0x20000
    s_mov_b32 s11, 0x20000
    s_mul_i32 s48, s20, {SLOT}
    s_add_u32 s48, s48, {L_R}
    s_lshl_b32 s44, s40, 11
    s_lshl_b32 s46, s41, 10
    s_add_u32 s44, s44, s46
    s_add_u32 s44, s44, {L_QX}
    v_add_u32 v{A_QX}, s44, v15
    v_and_b32 v2, 0x33, v1
    v_bfe_u32 v3, v1, 2, 1
    v_lshl_or_b32 v2, v3, 3, v2
    v_bfe_u32 v3, v1, 3, 1
    v_lshl_or_b32 v2, v3, 2, v2
    v_lshlrev_b32 v{A_KG}, 4, v2
    v_add_u32 v{A_K}, s48, v{A_KG}
    v_and_b32 v2, 15, v1
    v_lshrrev_b32 v3, 5, v1
    v_lshl_add_u32 v2, v3, 4, v2
    v_lshlrev_b32 v{A_VG}, 4, v2
    v_add_u32 v{A_V0}, s48, v{A_VG}
    v_and_b32 v5, 27, v1
    v_cmp_eq_u32 vcc, 16, v5
    v_mov_b32 v{A_IDX}, 0xdddddddd
    v_mov_b32 v5, 0x3f803f80
    s_mov_b32 s52, 0xffff
    s_mov_b32 s53, 0xffff
    v_cndmask_b32 v112, 0, v5, vcc
    """)
    for r in range(113, 144): e(f"v_mov_b32 v{r}, v112")
    e(f"""
    s_lshl_b32 s49, 1, s22
    s_mov_b32 s50, {int(OPT.get('iters', 8))}
    s_xor_b32 s46, s20, 4
    s_mul_i32 s46, s46, {SLOT}
    s_add_u32 s46, s46, {L_R}
    v_add_u32 v{A_MR}, s46, v{A_KG}
    v_lshlrev_b32 v4, 2, v1
    v_add_u32 v{A_ML}, s46, v4
    v_add_u32 v{A_MW}, s48, v4
    s_lshl_b32 s45, s22, 16
    s_lshl_b32 s51, s42, 10
    s_add_u32 s51, s51, s45
    s_lshl_b32 s47, s41, 15
    s_add_u32 s51, s51, s47
    s_add_u32 s51, s51, {WS_OF:#x}
    s_and_b32 s40, s20, 1
    s_bfe_u32 s41, s20, 0x10001
    s_lshl_b32 s45, s68, 16
    v_and_b32 v2, 31, v1
    s_lshl_b32 s43, s40, 5
    v_add_u32 v{A_ROW}, s43, v2
    v_lshlrev_b32 v2, 10, v{A_ROW}
    v_lshl_add_u32 v{A_OUT}, v3, 5, v2
    s_lshl_b32 s64, s41, 6
    s_lshl_b32 s44, s69, 7
    s_add_u32 s64, s64, s44
    s_add_u32 s64, s64, s45
    v_bfe_u32 v4, v1, 4, 1
    v_bfe_u32 v5, v1, 2, 2
    v_and_b32 v6, 1, v1
    v_bfe_u32 v7, v1, 3, 1
    v_xor_b32 v7, s41, v7
    v_lshlrev_b32 v2, 6, v7
    v_lshl_add_u32 v2, v6, 5, v2
    v_lshl_add_u32 v2, v4, 4, v2
    v_bfe_u32 v7, v1, 1, 1
    v_lshl_add_u32 v2, v7, 3, v2
    v_lshl_add_u32 v2, v5, 7, v2
    v_lshl_add_u32 v{A_WO}, v3, 9, v2
    s_lshl_b32 s44, s40, 10
    s_add_u32 s44, s44, {L_W}
    v_add_u32 v{A_O}, s44, v15
    s_lshl_b32 s65, s41, 7
    s_and_b32 s44, s20, 3
    s_lshl_b32 s66, s44, 10
    s_add_u32 s66, s66, s45
    s_add_u32 s66, s66, {WS_OF:#x}
    s_lshl_b32 s67, s44, 11
    s_add_u32 s67, s67, {L_W}
    """)

def attention(e):
    SCHED = SCHEDS[OPT.get("sched", "v5")]
    SA, SB, OA, OB = 16, 32, 48, 64
    QA, QB = 80, 84
    KR = (88, 92, 96, 100); VR = (112, 120, 128, 136); ZR = 104
    K = (KR[0],); V0 = (VR[0],); V1 = (VR[0] + 4,)
    def ex(S, a, b):
        for i in range(a, b): e(f"v_exp_f32 v{S+i}, v{S+i}")
    def smf(O, V, S):
        e(f"v_smfmac_f32_32x32x32_bf16 {vr(O,16)}, {vr(V,4)}, {vr(S,8)}, v{A_IDX}")
    ADV = ["s_add_u32 s96, s96, 1" if OPT.get('iters') else "s_ff1_i32_b64 s96, s[94:95]", "s_bitset0_b64 s[94:95], s96",
           "s_lshl_b32 s97, s96, 12", f"s_and_b32 s97, s97, {0x1f000 if OPT.get('iters') else 0x8001f000:#x}"]
    def kl(s): return f"buffer_load_dwordx4 {vr(KR[s],4)}, v{A_KG}, s[8:11], s97 offen sc1"
    def vl(s): return "\n".join(["s_mov_b64 exec, s[52:53]",
                                 f"buffer_load_dwordx4 {vr(VR[s],4)}, v{A_VG}, s[8:11], s97 offen offset:1024 sc1",
                                 f"buffer_load_dwordx4 {vr(VR[s]+4,4)}, v{A_VG}, s[8:11], s97 offen offset:1536 sc1",
                                 "s_mov_b64 exec, -1"])
    def tile(i, sched, x=None, last=False, fl=None):
        T = {
          "pr": f"s_setprio {3-i}", "wv": "s_waitcnt vmcnt(8)", "wv9": "s_waitcnt vmcnt(9)", "wv10": "s_waitcnt vmcnt(10)",
          "vl": vl((i + 3) % 4), "kl": kl(i % 4), "a0": ADV[0], "a1": ADV[1], "a2": ADV[2], "a3": ADV[3],
          "F": fl, "X": x, "nop": "s_nop 0",
          "lc": "s_sub_u32 s50, s50, 1" if last else None,
          "lt": "s_cmp_lg_u32 s50, 0" if last else None,
        }
        for (seq, S, So, Oo, Kn, Qo, V) in ((sched[0], SA, SB, OB, KR[i % 4], QB, VR[(i + 3) % 4]),
                                            (sched[1], SB, SA, OA, KR[(i + 1) % 4], QA, VR[i % 4])):
            n = 0
            for t in seq.split():
                if t[0] == "e" and t[1:].isdigit(): ex(S, n, n + int(t[1:])); n += int(t[1:])
                elif t == "S1": smf(Oo, V + 4, So + 8)
                elif t == "S0p": smf(Oo, V, So)
                elif t == "M": e(f"v_mfma_f32_32x32x16_bf16 {vr(So,16)}, {vr(Kn,4)}, {vr(Qo,4)}, 0")
                elif T[t] is not None: e(T[t])
            assert n == 16
    e.label("L_b10")
    e(f"""
    ds_read_b128 {vr(KR[0],4)}, v{A_K}
    s_mov_b64 exec, s[52:53]
    ds_read_b128 {vr(VR[0],4)}, v{A_V0} offset:1024
    ds_read_b128 {vr(VR[0]+4,4)}, v{A_V0} offset:1536
    s_mov_b64 exec, -1
    """)
    for r in range(ZR, ZR + 4): e(f"v_mov_b32 v{r}, 0")
    e(f"v_xor_b32 v3, 1024, v{A_QX}")
    e(f"v_mov_b32 v8, {L_RM}")
    for D in (OA, OB): e(f"v_mfma_f32_32x32x16_bf16 {vr(D,16)}, {vr(ZR,4)}, {vr(ZR,4)}, 0")
    e("s_setprio 3")
    e("s_waitcnt lgkmcnt(0)")
    e("s_barrier")
    stamp(e, 6)
    e(f"""
    ds_read_b32 v9, v8
    ds_read_b128 {vr(QA,4)}, v3
    ds_read_b128 {vr(QB,4)}, v{A_QX}
    s_waitcnt lgkmcnt(2)
    v_readfirstlane_b32 s94, v9
    s_waitcnt lgkmcnt(1)
    v_mfma_f32_32x32x16_bf16 {vr(SA,16)}, {vr(KR[0],4)}, {vr(QA,4)}, 0
    s_not_b32 s95, s94
    s_andn2_b32 s94, s94, s49
    s_mov_b32 s96, 0
    s_waitcnt lgkmcnt(0)
    v_mfma_f32_32x32x16_bf16 {vr(SB,16)}, {vr(KR[0],4)}, {vr(QB,4)}, 0
    """)
    for t in ADV + [kl(1), vl(1)]: e(t)
    if OPT.get("pst"): stamp(e, 1)
    e.c("own key tile (peeled): nothing here waits for remote data; the register rings are filled gradually")
    ex(SA, 0, 16)
    for t in ADV + [kl(2), vl(2)]: e(t)
    ex(SB, 0, 2); smf(OA, VR[0], SA); ex(SB, 2, 6); smf(OA, VR[0] + 4, SA + 8); ex(SB, 6, 10)
    if OPT.get("pst"): stamp(e, 2)
    e("s_waitcnt vmcnt(5)")
    if OPT.get("pst"): stamp(e, 3)
    e(f"v_mfma_f32_32x32x16_bf16 {vr(SA,16)}, {vr(KR[1],4)}, {vr(QA,4)}, 0")
    ex(SB, 10, 16)
    for t in ADV + [kl(3)]: e(t)
    e("s_setprio 2")
    if OPT.get("pst"): stamp(e, 4)
    NPL = int(OPT.get("npeel", 3))
    PS = (SCHED[0].replace(" vl ", " X vl F "), SCHED[1])
    tile(1, PS, x="\n".join([vl(3)] + ADV + [kl(0)]), fl="ds_read_b32 v9, v8" if NPL == 2 else None)
    if NPL == 3: tile(2, PS, fl="ds_read_b32 v9, v8")
    if OPT.get("pst"): stamp(e, 5)
    e.c("from here on chunks that were not ready at the start may be fetched: every chunk must have been published")
    e("s_waitcnt lgkmcnt(0)")
    e.label("L_full")
    e("""
    v_readfirstlane_b32 s30, v9
    s_cmp_eq_u32 s30, -1
    s_cbranch_scc1 L_loopin
    ds_read_b32 v9, v8
    s_sleep 2
    s_waitcnt lgkmcnt(0)
    s_branch L_full
    """)
    e(".p2align 6")
    e.label("L_loop")
    for i in range(4):
        if i == NPL: e.label("L_loopin")
        tile(i, SCHED, last=(i == 3))
    e("s_cbranch_scc1 L_loop")
    e("s_setprio 0")
    smf(OB, VR[3], SB)
    smf(OB, VR[3] + 4, SB + 8)
    stamp(e, 7)
    e.c("merge the two key halves: hand tile A to the partner wave, finalise tile B")
    e(f"""
    ds_write_b32 v{A_MW}, v{OA+8} offset:2048
    ds_write_b128 v{A_K}, {vr(OA,4)}
    ds_write_b128 v{A_K}, {vr(OA+4,4)} offset:1024
    s_waitcnt lgkmcnt(0)
    v_mov_b32 v{A_MW}, 0x57800000
    s_barrier
    """)
    tstamp(e, 1)
    e(f"""
    ds_read_b32 v{SA+8}, v{A_ML} offset:2048
    ds_read_b128 {vr(SA,4)}, v{A_MR}
    ds_read_b128 {vr(SA+4,4)}, v{A_MR} offset:1024
    s_nop 3
    s_waitcnt lgkmcnt(2)
    v_add_f32 v{OB+8}, v{OB+8}, v{SA+8}
    v_rcp_f32 v2, v{OB+8}
    s_waitcnt vmcnt(0) lgkmcnt(0)
    """)
    for j in range(4): e(f"v_pk_add_f32 {vr(OB+2*j,2)}, {vr(OB+2*j,2)}, {vr(SA+2*j,2)}")
    e.c("softmax guard: the fast path used a zero shift; it is exact only while the row sum is well inside the")
    e.c("fp32/bf16 range and nothing overflowed.  Otherwise redo this tile with the true row maximum.")
    for j in range(4): e(f"v_pk_mul_f32 {vr(SA+2*j,2)}, {vr(OB+2*j,2)}, v[2:3] op_sel_hi:[1,0]")
    e(f"""
    v_pk_fma_f32 v[12:13], {vr(OB,2)}, 0, {vr(OB+8,2)} op_sel_hi:[1,1,0]
    v_cvt_pk_bf16_f32 v4, v{SA}, v{SA+1}
    v_pk_fma_f32 v[12:13], {vr(OB+2,2)}, 0, v[12:13]
    v_cvt_pk_bf16_f32 v5, v{SA+2}, v{SA+3}
    v_pk_fma_f32 v[12:13], {vr(OB+4,2)}, 0, v[12:13]
    v_cvt_pk_bf16_f32 v6, v{SA+4}, v{SA+5}
    v_pk_fma_f32 v[12:13], {vr(OB+6,2)}, 0, v[12:13]
    v_cvt_pk_bf16_f32 v7, v{SA+6}, v{SA+7}
    v_cmp_nle_f32 vcc, 0x33800000, v12
    v_cmp_nle_f32 s[30:31], v13, v{A_MW}
    s_or_b64 vcc, vcc, s[30:31]
    s_cbranch_vccnz L_fallback
    """)
    e.label("L_fin")
    e("buffer_store_dwordx4 v[4:7], v15, s[12:15], s51 offen sc1")
    tstamp(e, 2)
    e.c("phase 3.  Producers (4 heads each) are taken in the order: those already published at B12b, then the rest")
    e(f"""
    v_mov_b32 v8, {L_RM + 4}
    s_cmp_lt_u32 s20, 4
    s_cbranch_scc1 L_p3
    s_barrier
    ds_read_b32 v9, v8
    s_waitcnt lgkmcnt(0)
    v_readfirstlane_b32 s94, v9
    s_nop 1
    s_xor_b32 s95, s94, 0xff
    """)
    def ldone():
        e(f"""
        s_ff1_i32_b64 s30, s[94:95]
        s_bitset0_b64 s[94:95], s30
        s_and_b32 s30, s30, 7
        s_lshl_b32 s31, s30, 13
        s_add_u32 m0, s31, s67
        s_lshl_b32 s30, s30, 12
        s_add_u32 s30, s30, s66
        s_add_u32 s31, s30, {32768 - 1024}
        buffer_load_dwordx4 v15, s[12:15], s30 offen sc1 lds
        buffer_load_dwordx4 v15, s[12:15], s31 offen offset:1024 sc1 lds
        """)
    NF = int(OPT.get("nf", 8))
    e(f"""
    s_bcnt1_i32_b32 s32, s94
    s_min_u32 s32, s32, {NF}
    s_sub_u32 s33, {NF}, s32
    """)
    for name, reg in (("ol1", 32), ("ol2", 33)):
        e(f"s_cmp_eq_u32 s{reg}, 0\ns_cbranch_scc1 L_{name}_x")
        e.label(f"L_{name}")
        ldone()
        e(f"s_sub_u32 s{reg}, s{reg}, 1\ns_cmp_lg_u32 s{reg}, 0\ns_cbranch_scc1 L_{name}")
        e.label(f"L_{name}_x")
        if name == "ol1":
            e("s_barrier")
            stamp(e, 8)
    BS = [int(c) for c in OPT.get("bs", "0246")]
    issued = NF
    for i, k in enumerate(BS):
        nxt = BS[i + 1] if i + 1 < len(BS) else 8
        e(f"s_waitcnt vmcnt({2*(issued - nxt)})\ns_barrier")
        while issued < min(8, nxt + NF): ldone(); issued += 1
    stamp_out(e)
    e("s_endpgm")
    e.label("L_p3")
    WF, CB, OF, ACC, NP, OA_ = 32, 112, 128, 16, 5, 144
    e(f"""
    v_mov_b32 v12, {L_MS}
    v_lshl_add_u32 v14, v{A_ROW}, 2, v12
    ds_read_b32 v10, v14 offset:768
    ds_read_b64 v[6:7], v12
    """)
    srd(e, 16, P_OUT, 0x200000)
    tstamp(e, 3)
    e("""
    s_barrier
    ds_read_b32 v9, v8
    s_waitcnt lgkmcnt(0)
    v_readfirstlane_b32 s94, v9
    s_nop 1
    s_xor_b32 s95, s94, 0xff
    """)
    tstamp(e, 4)
    def rdw(k, h, a):
        f = WF + 16 * (k % NP) + 4 * h
        e(f"ds_read_b64_tr_b16 {vr(f,2)}, v{a} offset:{h*2048}")
        e(f"ds_read_b64_tr_b16 {vr(f+2,2)}, v{a} offset:{h*2048+1024}")
    for k in range(8):
        a = 8 if k < NP else 2 + k - NP
        e(f"""
        s_ff1_i32_b64 s30, s[94:95]
        s_bitset0_b64 s[94:95], s30
        s_and_b32 s30, s30, 7
        s_lshl_b32 s30, s30, 13
        v_add_u32 v{a}, s30, v{A_WO}
        v_add_u32 v{OA_+k}, s30, v{A_O}
        """)
        if k < NP:
            if k: e("s_waitcnt lgkmcnt(6)")
            for h in range(4): rdw(k, h, a)
    e("s_waitcnt vmcnt(0)")
    e("s_barrier")
    stamp(e, 8)
    fill = []
    for j in range(8):
        fill += [f"v_lshlrev_b32 v{CB+2*j}, 16, v{XR+j}", f"v_and_b32 v{CB+1+2*j}, 0xffff0000, v{XR+j}"]
    fill += [f"v_fma_f32 v{CB+j}, -v{CB+j}, v10, v{CB+j}" for j in range(16)]
    if not OPT.get("nocoal"):
        fill += ["v_and_b32 v5, 31, v1", "v_lshrrev_b32 v11, 5, v1", "v_bfe_u32 v14, v1, 1, 2", "v_lshlrev_b32 v11, 1, v11",
                 "v_xor_b32 v11, v11, v14", "v_lshlrev_b32 v11, 4, v11", "v_lshl_add_u32 v11, v5, 6, v11", "v_add_u32 v152, s48, v11",
                 "v_xor_b32 v153, 16, v152",
                 "v_bfe_u32 v14, v1, 3, 2", "v_lshlrev_b32 v14, 4, v14", "v_xor_b32 v14, v14, v15", "v_add_u32 v154, s48, v14",
                 "v_lshrrev_b32 v5, 2, v1", "v_and_b32 v11, 3, v1", "v_lshlrev_b32 v11, 4, v11", "v_lshl_add_u32 v159, v5, 10, v11",
                 "s_and_b32 s28, s20, 1", "s_lshl_b32 s28, s28, 15", "s_add_u32 s64, s64, s28", "s_add_u32 s28, s64, 16384"]
    fill += ["s_lshl_b32 s29, s68, 6", f"v_add_u32 v13, s29, v{A_ROW}", "v_not_b32 v13, v13", "v_cmp_eq_u32 s[32:33], v13, v6"]
    pend = []
    def need(tag):
        if tag in pend:
            n = len(pend) - 1 - pend.index(tag)
            e(f"s_waitcnt lgkmcnt({n})")
            del pend[:pend.index(tag) + 1]
    for k in range(9):
        if k in BS: e("s_barrier")
        if k == 0: e("s_waitcnt lgkmcnt(0)")
        if k == 8: tstamp(e, 5)
        for h in range(4):
            if k > 0:
                need(("w", k - 1, h)); need(("o", k - 1, h))
                e(f"v_mfma_f32_32x32x16_bf16 {vr(ACC,16)}, {vr(WF+16*((k-1)%NP)+4*h,4)}, {vr(OF+4*h,4)}, {'0' if (k == 1 and h == 0) else vr(ACC,16)}")
            if k < 8:
                e(f"ds_read_b128 {vr(OF+4*h,4)}, v{OA_+k} offset:{h*2048}"); pend.append(("o", k, h))
            if 1 <= k <= 8 - NP:
                rdw(k - 1 + NP, h, 2 + k - 1); pend.append(("x", k, h)); pend.append(("w", k - 1 + NP, h))
            if k >= 4:
                for _ in range(3):
                    if fill: e(fill.pop(0))
    assert not fill
    e.c("out = g*a + (1-g)*b,  b = x (+ sigmoid(r)*y on the routed row)")
    e("""
    s_cmp_lg_u64 s[32:33], 0
    s_cbranch_scc1 L_moerow
    """)
    e.label("L_nomoe")
    e.c("O tiles are announced just before their stores are issued; a piece that had not arrived yet still holds the NaN fill")
    e(f"""
    s_nop 9
    v_cmp_u_f32 vcc, v{ACC}, v{ACC}
    {"s_branch L_slow3" if OPT.get("forceslow") else "s_cbranch_vccnz L_slow3"}
    """)
    e.label("L_epi")
    for j in range(8): e(f"v_pk_fma_f32 {vr(CB+2*j,2)}, {vr(ACC+2*j,2)}, v[10:11], {vr(CB+2*j,2)} op_sel_hi:[1,0,1]")
    for j in range(8):
        e(f"v_cvt_pk_bf16_f32 v{ACC+j}, v{CB+2*j}, v{CB+1+2*j}")
        if j == 3 and not OPT.get("nocoal"): e(f"ds_write_b128 v152, {vr(ACC,4)}")
    tstamp(e, 6)
    of = OPT.get("outf", "").replace("+", " ")
    if OPT.get("nocoal"):
        e(f"buffer_store_dwordx4 {vr(ACC,4)}, v{A_OUT}, s[16:19], s64 offen {of}")
        e(f"buffer_store_dwordx4 {vr(ACC+4,4)}, v{A_OUT}, s[16:19], s64 offen offset:16 {of}")
    else:
        e(f"""
        ds_write_b128 v153, {vr(ACC+4,4)}
        ds_read_b128 {vr(ACC+8,4)}, v154
        ds_read_b128 {vr(ACC+12,4)}, v154 offset:1024
        s_waitcnt lgkmcnt(1)
        buffer_store_dwordx4 {vr(ACC+8,4)}, v159, s[16:19], s64 offen {of}
        s_waitcnt lgkmcnt(0)
        buffer_store_dwordx4 {vr(ACC+12,4)}, v159, s[16:19], s28 offen {of}
        """)
    if OPT.get("g_glob"):
        srd(e, 8, P_DBG, 256)
        e("v_mov_b32 v3, 0\nbuffer_load_dword v2, v3, s[8:11], 0 offen sc1\ns_waitcnt vmcnt(0)\nv_readfirstlane_b32 s90, v2\ns_nop 3\ns_not_b32 s90, s90")
    gate(e, "g_end")
    stamp_out(e)
    e("s_endpgm")

    e.label("L_slow3")
    if OPT.get("cnt"):
        srd(e, 8, P_DBG, 256)
        e("v_mov_b32 v2, 0\nv_mov_b32 v3, 1\ns_mov_b64 exec, 1\nbuffer_atomic_add v3, v2, s[8:11], 0 offen\ns_mov_b64 exec, -1")
    e(f"""
    s_mul_i32 s30, s68, {CS}
    s_add_u32 s30, s30, {WS_C2:#x}
    v_mov_b32 v2, 0
    s_mov_b64 exec, 1
    """)
    poll(e, "ps", "buffer_load_dword v3, v2, s[12:15], s30 offen offset:8 sc1", "v_cmp_ne_u32 vcc, 0xff, v3", narrow=False, sleep=4)
    e(f"""
    s_mov_b64 exec, -1
    s_lshl_b32 s30, s68, 16
    s_and_b32 s31, s20, 1
    s_lshl_b32 s31, s31, 15
    s_add_u32 s30, s30, s31
    s_add_u32 s30, s30, {WS_OF:#x}
    s_mov_b32 s31, 8
    v_mov_b32 v2, v{A_WO}
    """)
    for j in range(16): e(f"v_mov_b32 v{ACC+j}, 0")
    e.label("L_slow3l")
    for h in range(4):
        e(f"buffer_load_dwordx4 {vr(OF+4*h,4)}, v15, s[12:15], s30 offen offset:{h*1024} sc1")
        rdw(0, h, 2)
    e("""
    s_add_u32 s30, s30, 4096
    s_sub_u32 s31, s31, 1
    s_waitcnt vmcnt(0) lgkmcnt(0)
    v_add_u32 v2, 8192, v2
    """)
    for h in range(4):
        e(f"v_mfma_f32_32x32x16_bf16 {vr(ACC,16)}, {vr(WF+4*h,4)}, {vr(OF+4*h,4)}, {vr(ACC,16)}")
    e("""
    s_cmp_lg_u32 s31, 0
    s_cbranch_scc1 L_slow3l
    s_nop 11
    s_branch L_epi
    """)
    e.label("L_moerow")
    e(f"""
    v_lshrrev_b32 v3, 5, v1
    v_lshl_add_u32 v12, v3, 6, v12
    v_add_u32 v12, s65, v12
    ds_read_b128 v[80:83], v12 offset:256
    ds_read_b128 v[84:87], v12 offset:272
    ds_read_b128 v[88:91], v12 offset:288
    ds_read_b128 v[92:95], v12 offset:304
    v_not_b32 v13, v7
    v_ashrrev_i32 v13, 31, v13
    v_or_b32 v13, 0x80000000, v13
    v_xor_b32 v13, v13, v7
    v_mul_f32 v13, {NLOG2E:#x}, v13
    v_exp_f32 v13, v13
    s_nop 0
    v_add_f32 v13, 1.0, v13
    v_rcp_f32 v13, v13
    s_nop 0
    v_fma_f32 v13, -v13, v10, v13
    s_mov_b64 exec, s[32:33]
    s_waitcnt lgkmcnt(0)
    """)
    for j in range(16): e(f"v_fmac_f32 v{CB+j}, v13, v{80+j}")
    e("s_mov_b64 exec, -1\ns_branch L_nomoe")

    M = OA
    e.label("L_fallback")
    e(f"""
    s_lshr_b32 s30, s20, 2
    s_lshl_b32 s30, s30, 11
    s_sub_u32 s8, s8, s30
    s_subb_u32 s9, s9, 0
    s_mov_b32 s30, 0
    v_mov_b32 v2, 0xff800000
    """)
    e.label("L_fb1")
    e(f"""
    buffer_load_dwordx4 {vr(K[0],4)}, v{A_KG}, s[8:11], s30 offen sc1
    s_waitcnt vmcnt(0)
    v_mfma_f32_32x32x16_bf16 {vr(SA,16)}, {vr(K[0],4)}, {vr(QB,4)}, 0
    s_add_u32 s30, s30, 2048
    s_nop 11
    """)
    for j in range(8): e(f"v_max3_f32 v2, v2, v{SA+2*j}, v{SA+2*j+1}")
    e("""
    s_cmp_lt_u32 s30, 0x20000
    s_cbranch_scc1 L_fb1
    v_mov_b32 v3, v2
    s_nop 1
    v_permlane32_swap_b32 v2, v3
    s_nop 1
    v_max_f32 v2, v2, v3
    """)
    for j in range(16): e(f"v_sub_f32 v{M+j}, 0, v2")
    for j in range(16): e(f"v_mov_b32 v{OB+j}, 0")
    e("s_mov_b32 s30, 0")
    e.label("L_fb2")
    e(f"""
    buffer_load_dwordx4 {vr(K[0],4)}, v{A_KG}, s[8:11], s30 offen sc1
    s_mov_b64 exec, s[52:53]
    buffer_load_dwordx4 {vr(V0[0],4)}, v{A_VG}, s[8:11], s30 offen offset:1024 sc1
    buffer_load_dwordx4 {vr(V1[0],4)}, v{A_VG}, s[8:11], s30 offen offset:1536 sc1
    s_mov_b64 exec, -1
    s_waitcnt vmcnt(0)
    v_mfma_f32_32x32x16_bf16 {vr(SA,16)}, {vr(K[0],4)}, {vr(QB,4)}, {vr(M,16)}
    s_add_u32 s30, s30, 2048
    s_nop 11
    """)
    ex(SA, 0, 16)
    e("s_nop 1")
    smf(OB, V0[0], SA)
    smf(OB, V1[0], SA + 8)
    e("""
    s_cmp_lt_u32 s30, 0x20000
    s_cbranch_scc1 L_fb2
    s_nop 15
    """)
    e(f"v_rcp_f32 v2, v{OB+8}\ns_nop 0")
    for j in range(8): e(f"v_mul_f32 v{SA+j}, v2, v{OB+j}")
    for j in range(4): e(f"v_cvt_pk_bf16_f32 v{4+j}, v{SA+2*j}, v{SA+2*j+1}")
    e("s_branch L_fin")

def helper(e):
    e.label("L_help")
    common_srd(e)
    srd(e, 8, P_WR, 1024)
    srd(e, 16, P_GW, 1024)
    e(f"""
    s_lshl_b32 s24, s22, 3
    s_mov_b32 m0, {L_WV}
    s_add_u32 s24, s24, s21
    buffer_load_dwordx4 v15, s[8:11], 0 offen lds
    s_mov_b32 m0, {L_WV + 1024}
    s_nop 0
    buffer_load_dwordx4 v15, s[16:19], 0 offen lds
    """)
    if OPT.get("g_glob"):
        srd(e, 64, P_DBG, 256)
        e("s_not_b32 s30, s90\nv_mov_b32 v2, s30\nv_mov_b32 v3, 0\nv_mov_b32 v4, s90\ns_mov_b64 exec, 1\nbuffer_atomic_umax v2, v3, s[64:67], 0 offen\nbuffer_atomic_umax v4, v3, s[64:67], 0 offen offset:4\ns_mov_b64 exec, -1")
    epoch_load(e)
    e.c("address registers for later (computed while phase 1 waits for its first data)")
    e(f"""
    v_mov_b32 v56, 0
    v_lshlrev_b32 v61, 2, v1
    v_mul_u32_u24 v62, {CS}, v1
    v_lshrrev_b32 v2, 3, v1
    v_and_b32 v3, 7, v1
    v_lshlrev_b32 v4, 4, v3
    v_mul_u32_u24 v14, 2752, v2
    v_add_u32 v14, v14, v4
    v_lshl_add_u32 v58, v2, 10, v4
    v_bfe_u32 v4, v1, 4, 1
    v_lshlrev_b32 v4, 6, v4
    v_xor_b32 v59, v58, v4
    v_lshrrev_b32 v2, 4, v1
    v_bfe_u32 v3, v1, 2, 2
    v_and_b32 v4, 3, v1
    v_lshl_add_u32 v5, v2, 3, v3
    v_lshlrev_b32 v5, 7, v5
    v_lshl_add_u32 v5, v4, 3, v5
    v_add_u32 v60, {L_M}, v5
    v_lshlrev_b32 v2, 4, v2
    v_bfrev_b32 v4, 1
    """)
    for t in range(4):
        e(f"v_cmp_eq_u32 vcc, {t}, v3\ns_nop 1\nv_cndmask_b32 v{6+t}, v4, v2, vcc\nv_min_u32 v{10+t}, 128, v{6+t}\nv_add_u32 v{10+t}, {L_H}, v{10+t}")
    e(f"""
    v_add_u32 v160, {L_MS}, v61
    v_mov_b32 v161, {L_MS}
    v_lshlrev_b32 v162, 1, v1
    v_add_u32 v162, {L_H}, v162
    s_lshr_b32 s64, s2, 3
    s_and_b32 s65, s2, 7
    s_lshl_b32 s25, 1, s65
    s_lshl_b32 s26, 1, s64
    s_lshl_b32 s27, 1, s21
    v_mov_b32 v163, s25
    v_mov_b32 v164, s26
    v_mov_b32 v165, s27
    v_mov_b32 v166, 0
    v_mov_b32 v167, -1
    v_mov_b32 v152, -1
    v_mov_b32 v153, -1
    v_mov_b32 v154, -1
    v_mov_b32 v155, -1
    v_mov_b32 v156, 0
    """)
    for k in range(3): e(f"ds_write_b32 v160, v56 offset:{256*k}")
    epoch_tag(e)
    e.c("workgroup 0 initialises every sync line: {0, tag, 0, 0}; the lines that carry the checked tag go last")
    e(f"""
    s_mul_i32 s34, s21, {CS}
    s_add_u32 s34, s34, {WS_C1:#x}
    s_mul_i32 s35, s22, {CS}
    s_add_u32 s35, s35, {WS_C2:#x}
    s_cmp_lg_u32 s2, 0
    s_cbranch_scc1 L_nl1
    v_mov_b32 v64, 0
    v_mov_b32 v65, s60
    v_mov_b32 v66, 0
    v_mov_b32 v67, 0
    s_mov_b32 s25, {WS_C2:#x}
    buffer_store_dwordx4 v[64:67], v62, s[12:15], s25 offen sc1
    s_mov_b64 exec, 0xff
    buffer_store_dwordx4 v[64:67], v62, s[12:15], s34 offen offset:2048 sc1
    s_waitcnt vmcnt(0)
    buffer_store_dwordx4 v[64:67], v62, s[12:15], s34 offen sc1
    s_mov_b64 exec, -1
    """)
    e.label("L_nl1")
    e.c("router and gate logits of 8 rows, chunk by chunk from the staged x tile: lane = (row l/8, 16-byte piece l%8)")
    e(f"""
    v_lshrrev_b32 v2, 3, v1
    s_lshl_b32 s25, s21, 3
    v_add_u32 v3, s25, v2
    v_lshlrev_b32 v30, 2, v2
    s_lshl_b32 s25, s24, 3
    v_add_u32 v31, s25, v2
    v_bfe_u32 v4, v3, 1, 3
    v_and_b32 v5, 7, v1
    v_xor_b32 v4, v4, v5
    v_lshlrev_b32 v4, 4, v4
    v_lshl_add_u32 v28, v3, 7, v4
    v_lshlrev_b32 v5, 4, v5
    v_add_u32 v29, {L_WV}, v5
    v_mov_b32 v4, 0
    v_mov_b32 v5, 0
    s_mov_b32 s25, 0
    """)
    gate(e, "g_b0")
    e("s_barrier\ns_waitcnt vmcnt(0)")
    e.label("L_hd")
    e("""
    s_add_u32 s26, s25, s23
    s_and_b32 s26, s26, 7
    s_lshl_b32 s26, s26, 7
    v_add_u32 v2, s26, v29
    ds_read_b128 v[20:23], v2
    ds_read_b128 v[24:27], v2 offset:1024
    ds_read_b128 v[16:19], v28
    v_add_u32 v28, 8192, v28
    """)
    for nm, it in (("g_b7", 6), ("g_ba", 7)):
        if OPT.get(nm):
            e(f"s_cmp_lg_u32 s25, {it}\ns_cbranch_scc1 L_ng")
            gate(e, nm)
            e.label("L_ng")
    e("""
    s_barrier
    s_cmp_lg_u32 s25, 5
    s_cbranch_scc1 L_hd1
    s_mov_b64 exec, 1
    buffer_load_dword v63, v56, s[12:15], s34 offen offset:4 sc1
    s_mov_b64 exec, -1
    """)
    e.label("L_hd1")
    e("s_add_u32 s25, s25, 1\ns_waitcnt lgkmcnt(0)")
    for j in range(4):
        e(f"v_dot2c_f32_bf16 v4, v{16+j}, v{20+j}")
        e(f"v_dot2c_f32_bf16 v5, v{16+j}, v{24+j}")
    e("s_cmp_lt_u32 s25, 8\ns_cbranch_scc1 L_hd")
    e.c("the sync line this workgroup ORs into first must carry this launch's tag")
    e(f"""
    s_setprio 3
    s_mov_b64 exec, 1
    s_waitcnt vmcnt(0)
    v_cmp_ne_u32 vcc, s60, v63
    s_cbranch_vccz L_pv_x
    """)
    poll(e, "pv", "buffer_load_dword v63, v56, s[12:15], s34 offen offset:4 sc1", "v_cmp_ne_u32 vcc, s60, v63", narrow=False)
    e("s_mov_b64 exec, -1")
    for m in DPP6[:3]:
        e(f"v_add_f32_dpp v4, v4, v4 {m} bank_mask:0xf\nv_add_f32_dpp v5, v5, v5 {m} bank_mask:0xf\ns_nop 0")
    e(f"""
    v_mul_f32 v5, {NLOG2E:#x}, v5
    v_exp_f32 v5, v5
    v_ashrrev_i32 v2, 31, v4
    v_add_f32 v5, 1.0, v5
    v_rcp_f32 v16, v5
    v_or_b32 v2, 0x80000000, v2
    v_xor_b32 v19, v2, v4
    v_not_b32 v18, v31
    s_mov_b32 s28, 0x80808080
    s_mov_b32 s29, 0x80808080
    s_mov_b64 exec, s[28:29]
    ds_max_u64 v161, v[18:19] offset:8
    s_mov_b64 exec, 1
    ds_read_b64 v[18:19], v161 offset:8
    s_lshl_b32 s26, s24, 5
    s_add_u32 s26, s26, {WS_G:#x}
    s_lshl_b32 s25, 1, s22
    v_mov_b32 v57, s25
    v_mov_b32 v5, s60
    v_mov_b32 v20, s25
    s_waitcnt lgkmcnt(0)
    """)
    stamp(e, 8)
    e("s_barrier")
    gate(e, "g_b9")
    e("""
    s_barrier
    buffer_atomic_or v20, v56, s[12:15], s34 offen sc0
    """)
    stamp(e, 5)
    NR = int(OPT.get("nr", 4 + int(OPT.get("npeel", 3))))
    gate(e, "g_bc")
    e(f"""
    s_barrier
    s_waitcnt vmcnt(0)
    v_or_b32 v63, v20, v57
    v_bcnt_u32_b32 v2, v63, 0
    v_cmp_gt_u32 vcc, {NR}, v2
    s_cbranch_vccz L_p1_y
    """)
    poll(e, "p1", "buffer_atomic_or v63, v56, s[12:15], s34 offen sc0", f"v_bcnt_u32_b32 v2, v63, 0\nv_cmp_gt_u32 vcc, {NR}, v2", narrow=False)
    e.label("L_p1_y")
    e("""
    ds_write_b32 v161, v63 offset:16
    v_cmp_ne_u32 vcc, -1, v63
    s_waitcnt lgkmcnt(0)
    """)
    gate(e, "g_b10")
    e("s_barrier")
    stamp(e, 6)
    e("""
    s_mov_b64 exec, s[28:29]
    buffer_store_dword v16, v30, s[12:15], s26 offen sc1
    s_mov_b64 exec, 1
    buffer_atomic_umax_x2 v[18:19], v56, s[12:15], s34 offen offset:2056
    s_cbranch_vccz L_pf_x
    """)
    e(f"s_sleep {int(OPT.get('pfd', 10))}")
    poll(e, "pf", "buffer_atomic_or v63, v56, s[12:15], s34 offen sc0", "v_cmp_ne_u32 vcc, -1, v63", narrow=False, sleep=int(OPT.get("pfs", 4)))
    e("""
    ds_write_b32 v161, v167 offset:16
    buffer_atomic_or v57, v56, s[12:15], s34 offen offset:2048
    s_mov_b64 exec, -1
    """)
    e(f"""
    {"s_branch L_noy" if OPT.get("nohelp") else ""}
    s_setprio {OPT.get("hp", 0)}
    """)
    def stage(P, size, voff, rowb, lo, hi, name, win=None):
        if P is not None:
            srd(e, 8, P, size)
            e(f"s_mov_b32 s29, {lo}")
        e.label(f"L_st{name}")
        e(f"""
        s_mov_b32 m0, s29
        s_add_u32 s29, s29, 1024
        buffer_load_dwordx4 v{voff}, s[8:11], s99 offen lds
        s_add_u32 s99, s99, {8*rowb}
        {f"s_waitcnt vmcnt({win})" if win is not None else ""}
        s_cmp_lt_u32 s29, {hi}
        s_cbranch_scc1 L_st{name}
        """)
    def frags(base, buf):
        for f in range(8):
            o = buf * 8192 + (f // 4) * 4096 + (f % 4) * 32
            if f == 7: e("s_waitcnt lgkmcnt(8)")
            e(f"ds_read_b64_tr_b16 {vr(base+4*f,2)}, v60 offset:{o}")
            e(f"ds_read_b64_tr_b16 {vr(base+4*f+2,2)}, v60 offset:{o+512}")
        e("s_waitcnt lgkmcnt(0)")
    def wo_setup():
        srd(e, 16, P_WO, 0x80000)
        e("s_lshl_b32 s30, s68, 14\ns_and_b32 s30, s30, 0xffff\ns_mov_b32 s31, 0\ns_lshl_b32 s100, s69, 7")
    def wo_batch(name, n, win=None, upto=None):
        e(f"s_add_u32 s33, s31, {n}" if upto is None else f"s_mov_b32 s33, {upto}")
        e.label(f"L_wo{name}")
        e("""
        s_mov_b32 m0, s30
        s_lshl_b32 s32, s30, 3
        s_add_u32 s32, s32, s100
        """)
        for k in range(4):
            e(f"buffer_load_dwordx4 v59, s[16:19], s32 offen offset:{k*1024} lds")
            if k < 3: e("s_add_u32 s32, s32, 7168")
            if win is not None: e(f"s_waitcnt vmcnt({win})")
        e("""
        s_add_u32 s30, s30, 4096
        s_and_b32 s30, s30, 0xffff
        s_add_u32 s31, s31, 4
        s_cmp_lt_u32 s31, s33
        """)
        e(f"s_cbranch_scc1 L_wo{name}")
    wo_setup()
    e(f"""
    s_cmp_ge_u32 s2, {NMOE}
    s_cbranch_scc1 L_a0
    s_mul_i32 s66, s65, {64*2752}
    s_lshl_b32 s27, s64, 7
    s_add_u32 s66, s66, s27
    s_mov_b32 s99, s66
    """)
    SW = int(OPT.get("sw", 2))
    stage(P_WG, 512 * 2752, 14, 2752, L_M, L_M + 8192, "g", SW)
    e("s_mov_b32 s99, s66")
    stage(P_WU, 512 * 2752, 14, 2752, L_M + 8192, L_M + 16384, "u", SW)
    e("s_branch L_a1")
    e.label("L_a0")
    wo_batch("n", 0, win=SW, upto=24)
    e.label("L_a1")
    e(f"s_mov_b32 s25, {WS_C1:#x}\ns_mov_b64 exec, 0xff")
    poll(e, "pa", "buffer_load_dwordx4 v[16:19], v62, s[12:15], s25 offen offset:2048 sc1", "v_cmp_ne_u32 vcc, -1, v16", sleep=16, narrow=False, lowprio=OPT.get("hp", 0))
    e(f"""
    ds_max_u64 v161, v[18:19]
    s_mov_b64 exec, 1
    ds_read_b32 v2, v161
    s_cmp_lg_u32 s2, 0
    s_cbranch_scc1 L_noep
    s_mov_b32 s27, {WS_EP:#x}
    buffer_store_dword v5, v56, s[12:15], s27 offen
    """)
    e.label("L_noep")
    e("""
    s_setprio 3
    s_waitcnt lgkmcnt(0)
    v_readfirstlane_b32 s63, v2
    s_mov_b64 exec, -1
    s_setprio HPRIO
    s_nop 1
    s_not_b32 s63, s63
    s_min_u32 s63, s63, 2047
    """)
    stamp(e, 1)
    e(f"""
    s_cmp_ge_u32 s2, {NMOE}
    s_cbranch_scc1 L_worest
    s_lshl_b32 s27, s63, 10
    s_lshl_b32 s28, s65, 7
    s_add_u32 s27, s27, s28
    """)
    for f in range(8):
        e(f"buffer_load_dwordx4 {vr(16+4*f,4)}, v{6+f%4}, s[4:7], s27 offen offset:{(f//4)*64}")
    frags(64, 0); frags(96, 1)
    e("s_waitcnt vmcnt(0)")
    for f in range(8):
        e(f"v_mfma_f32_16x16x32_bf16 v[48:51], {vr(16+4*f,4)}, {vr(64+4*f,4)}, {'0' if f == 0 else 'v[48:51]'}")
        if OPT.get("pace"): e(f"s_sleep {OPT['pace']}")
        e(f"v_mfma_f32_16x16x32_bf16 v[52:55], {vr(16+4*f,4)}, {vr(96+4*f,4)}, {'0' if f == 0 else 'v[52:55]'}")
        if OPT.get("pace"): e(f"s_sleep {OPT['pace']}")
    e(f"""
    s_lshl_b32 s66, s64, 12
    s_add_u32 s66, s66, {WS_P1:#x}
    s_lshl_b32 s27, s65, 9
    s_add_u32 s27, s27, s66
    s_mul_i32 s67, s64, {CS}
    s_add_u32 s67, s67, {WS_C3:#x}
    s_nop 1
    buffer_store_dword v48, v61, s[12:15], s27 offen sc1
    buffer_store_dword v52, v61, s[12:15], s27 offen offset:256 sc1
    """)
    e("s_lshl_b32 s99, s64, 16\ns_lshl_b32 s28, s65, 7\ns_add_u32 s99, s99, s28")
    stage(P_WD, 1376 * 1024, 58, 1024, L_M, L_M + 4096, "d1")
    e("""
    s_waitcnt vmcnt(0)
    s_mov_b64 exec, 1
    buffer_atomic_or v163, v56, s[12:15], s67 offen
    s_mov_b64 exec, -1
    """)
    stage(None, 0, 58, 1024, 0, L_M + 8192, "d2")
    e("s_waitcnt vmcnt(0)")
    stamp(e, 2)
    e("s_mov_b64 exec, 1")
    poll(e, "pc", "buffer_load_dword v2, v56, s[12:15], s67 offen sc1", "v_cmp_ne_u32 vcc, 0xff, v2", narrow=False, sleep=16, lowprio=OPT.get("hp", 0))
    e("s_mov_b64 exec, -1")
    for r in range(8):
        e(f"buffer_load_dword v{16+2*r}, v61, s[12:15], s66 offen offset:{r*512} sc1")
        e(f"buffer_load_dword v{17+2*r}, v61, s[12:15], s66 offen offset:{r*512+256} sc1")
    wo_batch("c", 8)
    frags(64, 0)
    e(f"""
    s_cmp_eq_u32 s64, 21
    s_cselect_b32 exec_hi, 0, -1
    s_setprio 3
    s_waitcnt vmcnt(8)
    v_pk_add_f32 v[16:17], v[16:17], v[18:19]
    v_pk_add_f32 v[20:21], v[20:21], v[22:23]
    v_pk_add_f32 v[24:25], v[24:25], v[26:27]
    v_pk_add_f32 v[28:29], v[28:29], v[30:31]
    v_pk_add_f32 v[16:17], v[16:17], v[20:21]
    v_pk_add_f32 v[24:25], v[24:25], v[28:29]
    v_pk_add_f32 v[16:17], v[16:17], v[24:25]
    v_mul_f32 v2, {NLOG2E:#x}, v16
    v_exp_f32 v2, v2
    v_mul_f32 v16, v16, v17
    v_add_f32 v2, 1.0, v2
    v_rcp_f32 v2, v2
    s_nop 0
    v_mul_f32 v2, v2, v16
    v_cvt_pk_bf16_f32 v2, v2, v2
    ds_write_b16 v162, v2
    s_setprio HPRIO
    s_mov_b64 exec, -1
    """)
    for f in range(8):
        e(f"ds_read_b128 {vr(16+4*f,4)}, v{10+f%4} offset:{(f//4)*64}")
    e("s_waitcnt lgkmcnt(0)")
    for f in range(8):
        e(f"v_mfma_f32_16x16x32_bf16 v[48:51], {vr(16+4*f,4)}, {vr(64+4*f,4)}, {'0' if f == 0 else 'v[48:51]'}")
        if OPT.get("pace"): e(f"s_sleep {OPT['pace']}")
    e(f"""
    s_mul_i32 s27, s65, 5632
    s_lshl_b32 s28, s64, 8
    s_add_u32 s27, s27, s28
    s_add_u32 s27, s27, {WS_YP:#x}
    s_mul_i32 s67, s65, {CS}
    s_add_u32 s67, s67, {WS_C4:#x}
    s_nop 1
    buffer_store_dword v48, v61, s[12:15], s27 offen sc1
    """)
    wo_batch("d", 8)
    e("""
    s_waitcnt vmcnt(0)
    s_mov_b64 exec, 1
    buffer_atomic_or v164, v56, s[12:15], s67 offen
    s_mov_b64 exec, -1
    """)
    stamp(e, 3)
    e.label("L_worest")
    e(f"""
    s_lshl_b32 s27, s22, 16
    s_lshl_b32 s28, s21, 12
    s_add_u32 s27, s27, s28
    s_add_u32 s27, s27, {WS_OF:#x}
    s_add_u32 s28, s27, 32768
    """)
    for k in range(8):
        e(f"buffer_store_dwordx4 v[152:155], v15, s[12:15], s{27 + k//4} offen offset:{(k%4)*1024} sc1")
        if OPT.get("pw"): e(f"s_waitcnt vmcnt({int(OPT['pw'])-1})")
    e(f"""
    s_lshl_b32 s27, s68, 8
    s_mov_b32 m0, {L_MS + 768}
    s_add_u32 s27, s27, {WS_G:#x}
    buffer_load_dword v61, s[12:15], s27 offen sc1 lds
    """)
    wo_batch("r", 0, win=int(OPT.get("ww", 7)), upto=64)
    e("s_waitcnt vmcnt(0)")
    stamp(e, 4)
    e(f"""
    s_lshr_b32 s27, s63, 6
    s_cmp_lg_u32 s27, s68
    s_cbranch_scc1 L_noy
    s_mul_i32 s67, s69, {CS}
    s_add_u32 s67, s67, {WS_C4:#x}
    s_mov_b64 exec, 1
    """)
    poll(e, "pm", "buffer_load_dword v2, v56, s[12:15], s67 offen sc1", "v_cmp_ne_u32 vcc, 0x3fffff, v2", narrow=False, sleep=16, lowprio=OPT.get("hp", 0))
    e(f"""
    s_mov_b64 exec, -1
    s_mul_i32 s27, s69, 5632
    s_add_u32 s27, s27, {WS_YP:#x}
    s_add_u32 s28, s27, 4096
    """)
    for c in range(22):
        e(f"buffer_load_dword v{16+c}, v61, s[12:15], s{27 + c//16} offen offset:{(c%16)*256} sc1")
    e("s_setprio 3\ns_waitcnt vmcnt(0)")
    for c in range(1, 11): e(f"v_pk_add_f32 v[16:17], v[16:17], {vr(16+2*c,2)}")
    e("v_add_f32 v16, v16, v17\nds_write_b32 v160, v16 offset:256")
    e.label("L_noy")
    e(f"""
    s_setprio 3
    s_mul_i32 s26, s68, {CS}
    s_add_u32 s26, s26, {WS_C2:#x}
    s_mov_b64 exec, 1
    s_waitcnt lgkmcnt(0)
    """)
    stamp(e, 7)
    gate(e, "g_b11")
    T1 = int(OPT.get("t1", 4)); PS = int(OPT.get("p2s", 0))
    e(f"""
    s_mov_b32 s30, 0
    s_mov_b32 s61, 0
    s_barrier
    {f"s_sleep {OPT['ed']}" if OPT.get("ed") else ""}
    buffer_atomic_or v165, v56, s[12:15], s35 offen
    buffer_atomic_or v166, v56, s[12:15], s26 offen sc0
    s_sleep {OPT.get("pg", 5)}
    """)
    for k in range(2):
        old, oth = (166, 156)[k], (156, 166)[k]
        e.label(f"L_qn{k}")
        if PS: e(f"s_sleep {PS}")
        e(f"""
        buffer_atomic_or v{oth}, v56, s[12:15], s26 offen sc0
        s_waitcnt vmcnt(1)
        """)
        e.label(f"L_q{k}")
        e(f"""
        v_readfirstlane_b32 s31, v{old}
        s_add_u32 s61, s61, 1
        s_and_b32 s31, s31, 0xff
        s_cmp_gt_u32 s61, {POLL_MAX}
        s_cselect_b32 s31, 0xff, s31
        s_bcnt1_i32_b32 s32, s31
        s_cmp_lt_u32 s32, {T1}
        s_cbranch_scc1 L_qc{k}
        s_cmp_lg_u32 s30, 0
        s_cbranch_scc1 L_qd{k}
        v_mov_b32 v2, s31
        s_mov_b32 s30, 1
        ds_write_b32 v161, v2 offset:20
        s_waitcnt lgkmcnt(0)
        s_barrier
        """)
        e.label(f"L_qd{k}")
        e(f"""
        s_cmp_eq_u32 s32, 8
        s_cbranch_scc1 L_qx
        """)
        e.label(f"L_qc{k}")
    e("s_branch L_qn0")
    e.label("L_qx")
    e("s_barrier\ns_barrier")
    e("buffer_atomic_or v165, v56, s[12:15], s35 offen offset:8")
    for i in range(len(OPT.get("bs", "0246")) - 1): e("s_barrier")
    if not OPT.get("tail"): stamp_out(e)
    e.label("L_end")
    e("s_endpgm")

def main(path):
    e = Asm()
    kn = NAME + "_kernel"
    e(f".globl {kn}\n.p2align 8\n.type {kn},@function")
    e.label(kn)
    entry(e)
    producer(e)
    compute(e)
    attention(e)
    helper(e)
    for p in check_text(e.text()): print("HAZARD", p)
    body = e.text().replace("HPRIO", str(OPT.get("hp", 0))).replace("EARLYWAIT", "s_waitcnt vmcnt(0)" if OPT.get("noearly") else "s_nop 0")
    hdr = f"""; gated mix of an MHA block and a top-1 routed FFN branch, gfx950: one persistent launch.
; @launch grid=(256,1,1) block=(576,1,1) lds={LDS_TOTAL}
.amdgcn_target "amdgcn-amd-amdhsa--gfx950"
.text
"""
    tail = f""".section .rodata,"a"
.p2align 6
.amdhsa_kernel {kn}
  .amdhsa_next_free_vgpr 168
  .amdhsa_next_free_sgpr 102
  .amdhsa_accum_offset 168
  .amdhsa_group_segment_fixed_size 0
  .amdhsa_kernarg_size 96
  .amdhsa_user_sgpr_count 2
  .amdhsa_user_sgpr_kernarg_segment_ptr 1
  .amdhsa_system_sgpr_workgroup_id_x 1
.end_amdhsa_kernel
"""
    if OPT.get("empty"):
        pos, blk, lds, nv = OPT["empty"].split(",")
        L0 = f"; @launch kernel={kn} grid=(256,1,1) block=(576,1,1) lds={LDS_TOTAL}\n"
        L1 = f"; @launch kernel=empty_kernel grid=(256,1,1) block=({blk},1,1) lds={lds}\n"
        hdr = "; diag\n" + (L1 + L0 if pos == "b" else L0 + L1 if pos == "a" else L0) + '.amdgcn_target "amdgcn-amd-amdhsa--gfx950"\n.text\n'
        if pos != "n":
            body += ".globl empty_kernel\n.p2align 8\n.type empty_kernel,@function\nempty_kernel:\n    s_endpgm\n"
            tail += ".p2align 6\n" + tail[tail.index(".amdhsa_kernel"):].replace(kn, "empty_kernel").replace("168", nv)
    open(path, "w").write(hdr + body + tail)

if __name__ == "__main__":
    for o in sys.argv[2:]:
        if "=" in o: OPT[o.split("=")[0]] = o.split("=")[1]
        else: OPT[o] = True
    INSTR = bool(OPT.get("instr"))
    main(sys.argv[1])
```
